```python
import torch

def _softmax(x, axis=-1):
    return torch.softmax(x, dim=axis)
def _gelu(x):
    return torch.nn.functional.gelu(x, approximate="tanh")
def _silu(x):
    return torch.nn.functional.silu(x)
def _sigmoid(x):
    return torch.sigmoid(x)
def _layernorm(x, axis=-1, eps=1e-5):
    m = x.mean(dim=axis, keepdim=True)
    v = x.var(dim=axis, keepdim=True, unbiased=False)
    return (x - m) / torch.sqrt(v + eps)
def _scatter_add(tgt, idx, src, axis=0):
    return tgt.clone().index_add_(axis, idx, src)
def _segment_sum(src, seg, n):
    out = torch.zeros((n,) + src.shape[1:], dtype=src.dtype)
    return out.index_add_(0, seg, src)
def _pad(x, pw):
    flat = tuple(v for pair in reversed(pw) for v in pair)
    return torch.nn.functional.pad(x, flat)

kernel_name = 'concat_heads__gqa_block_cached__gqa_block_cached__near_ridge'

def setup_inputs():

    _w = (lambda a: (lambda t: t.to(torch.bfloat16) if t.is_floating_point() else t)(torch.as_tensor(a)))
    def _A_setup():
        B, Sq, D = 32, 64, 576
        Hq, Hkv, Sk, Dh = 32, 16, 512, 128
        assert Hq % Hkv == 0, (Hq, Hkv)
        return {
            "x": _w((lambda *s: torch.randn(*s, dtype=torch.bfloat16) * 0.8)(B, Sq, D)),
            "k_cache": _w((lambda *s: torch.randn(*s, dtype=torch.bfloat16) * 0.8)(B, Hkv, Sk, Dh)),
            "v_cache": _w((lambda *s: torch.randn(*s, dtype=torch.bfloat16) * 0.05)(B, Hkv, Sk, Dh)),
            "wq": _w((lambda *s: torch.randn(*s, dtype=torch.bfloat16) * 0.8)(D, Hq * Dh) * (D ** -0.5)),
            "wo": _w((lambda *s: torch.randn(*s, dtype=torch.bfloat16) * 0.05)(Hq * Dh, D) * ((Hq * Dh) ** -0.5)),
        }
    _A_in = _A_setup()

    def _B_setup():
        B, Sq, D = 32, 64, 576
        Hq, Hkv, Sk, Dh = 32, 16, 512, 128
        assert Hq % Hkv == 0, (Hq, Hkv)
        return {
            "x": _w((lambda *s: torch.randn(*s, dtype=torch.bfloat16) * 0.8)(B, Sq, D)),
            "k_cache": _w((lambda *s: torch.randn(*s, dtype=torch.bfloat16) * 0.8)(B, Hkv, Sk, Dh)),
            "v_cache": _w((lambda *s: torch.randn(*s, dtype=torch.bfloat16) * 0.05)(B, Hkv, Sk, Dh)),
            "wq": _w((lambda *s: torch.randn(*s, dtype=torch.bfloat16) * 0.8)(D, Hq * Dh) * (D ** -0.5)),
            "wo": _w((lambda *s: torch.randn(*s, dtype=torch.bfloat16) * 0.05)(Hq * Dh, D) * ((Hq * Dh) ** -0.5)),
        }
    _B_in = _B_setup()

    return {
        "A_x": _A_in["x"],
        "A_k_cache": _A_in["k_cache"],
        "A_v_cache": _A_in["v_cache"],
        "A_wq": _A_in["wq"],
        "A_wo": _A_in["wo"],
        "B_x": _B_in["x"],
        "B_k_cache": _B_in["k_cache"],
        "B_v_cache": _B_in["v_cache"],
        "B_wq": _B_in["wq"],
        "B_wo": _B_in["wo"],
    }

def reference(A_x, A_k_cache, A_v_cache, A_wq, A_wo, B_x, B_k_cache, B_v_cache, B_wq, B_wo):
    def _A_ref(x, k_cache, v_cache, wq, wo):
        B, Sq, D = x.shape
        Hq, Dh = 32, 128
        Hkv = k_cache.shape[1]
        rep = Hq // Hkv
        q = (lambda x, *d: x.permute(*d))((x @ wq).reshape(B, Sq, Hq, Dh), 0, 2, 1, 3)
        k = (lambda x, n, axis: torch.repeat_interleave(x, n, dim=axis))(k_cache, rep, axis=1)
        v = (lambda x, n, axis: torch.repeat_interleave(x, n, dim=axis))(v_cache, rep, axis=1)
        scores = torch.einsum("bhqd,bhkd->bhqk", q, k) * (Dh ** -0.5)
        p = _softmax(scores, axis=-1)
        o = torch.einsum("bhqk,bhkd->bhqd", p, v)
        return (lambda x, *d: x.permute(*d))(o, 0, 2, 1, 3).reshape(B, Sq, Hq * Dh) @ wo

    def _B_ref(x, k_cache, v_cache, wq, wo):
        B, Sq, D = x.shape
        Hq, Dh = 32, 128
        Hkv = k_cache.shape[1]
        rep = Hq // Hkv
        q = (lambda x, *d: x.permute(*d))((x @ wq).reshape(B, Sq, Hq, Dh), 0, 2, 1, 3)
        k = (lambda x, n, axis: torch.repeat_interleave(x, n, dim=axis))(k_cache, rep, axis=1)
        v = (lambda x, n, axis: torch.repeat_interleave(x, n, dim=axis))(v_cache, rep, axis=1)
        scores = torch.einsum("bhqd,bhkd->bhqk", q, k) * (Dh ** -0.5)
        p = _softmax(scores, axis=-1)
        o = torch.einsum("bhqk,bhkd->bhqd", p, v)
        return (lambda x, *d: x.permute(*d))(o, 0, 2, 1, 3).reshape(B, Sq, Hq * Dh) @ wo

    a = _A_ref(A_x, A_k_cache, A_v_cache, A_wq, A_wo)
    b = _B_ref(B_x, B_k_cache, B_v_cache, B_wq, B_wo)
    return torch.concatenate([a, b], axis=-1)
```

```python
def V(n, cnt=1):
    if cnt == 1:
        return "v%d" % n
    return "v[%d:%d]" % (n, n + cnt - 1)


def S(n, cnt=1):
    if cnt == 1:
        return "s%d" % n
    return "s[%d:%d]" % (n, n + cnt - 1)


def vr(n, cnt=1):
    return ["v%d" % i for i in range(n, n + cnt)]


def sr(n, cnt=1):
    return ["s%d" % i for i in range(n, n + cnt)]


TRANS = ("v_exp_f32", "v_rcp_f32", "v_log_f32", "v_rsq_f32", "v_sqrt_f32")


class Ins:
    __slots__ = ("text", "kind", "w", "r", "passes", "srcc", "states", "store_data")

    def __init__(self, text, kind, w, r, passes=0, srcc=(), states=1, store_data=()):
        self.text = text
        self.kind = kind
        self.w = set(w)
        self.r = set(r)
        self.passes = passes
        self.srcc = set(srcc)
        self.states = states
        self.store_data = set(store_data)


class Asm:
    def __init__(self):
        self.lines = []
        self.hist = []
        self.nops_inserted = 0
        self.n_ins = 0

    def raw(self, text):
        self.lines.append(text)

    def comment(self, text):
        self.lines.append("    ; " + text)

    def label(self, name, fence=True):
        if fence:
            self.fence()
        self.lines.append(name + ":")

    def fence(self):
        need = 0
        dist = 0
        for p in reversed(self.hist):
            worst = 0
            if p.kind == "mfma":
                worst = 12 if p.passes == 8 else 8
            elif p.kind in ("valu", "trans", "permlane", "readlane"):
                worst = 5 if any(x[0] == "s" or x == "vcc" for x in p.w) else 2
            elif p.kind == "salu":
                worst = 1 if "m0" in p.w else 0
            elif p.store_data:
                worst = 2
            need = max(need, worst - dist)
            dist += p.states
            if dist >= 12:
                break
        if need > 0:
            self._nop(need)
        self.hist = []

    def _nop(self, n):
        while n > 0:
            k = min(n, 16)
            self.lines.append("    s_nop %d" % (k - 1))
            self.hist.append(Ins("s_nop", "misc", [], [], states=k))
            self.nops_inserted += k
            n -= k

    def nop(self, n):
        self._nop(n)

    def _need(self, p, c):
        need = 0
        cv = c.kind in ("valu", "trans", "permlane", "readlane")
        pv = p.kind in ("valu", "trans", "permlane", "readlane")
        if pv:
            wv = {x for x in p.w if x[0] == "v" and x != "vcc"}
            ws = {x for x in p.w if x[0] == "s" or x == "vcc"}
            if c.kind == "mfma" and (wv & c.r):
                need = max(need, 2)
            if c.kind == "permlane" and (wv & (c.r | c.w)):
                need = max(need, 2)
            if c.kind == "readlane" and (wv & c.r):
                need = max(need, 1)
            if p.kind == "trans" and cv and c.kind != "trans" and (wv & (c.r | c.w)):
                need = max(need, 1)
            if ws:
                if cv and (ws & c.r):
                    need = max(need, 2)
                if c.kind in ("vmem", "dma") and (ws & c.r):
                    need = max(need, 5)
                if c.kind in ("salu", "smem") and (ws & c.r):
                    need = max(need, 2)
        if p.kind == "mfma":
            big = p.passes == 8
            d = p.w
            if c.kind == "mfma":
                ab = c.r - c.srcc
                if d & ab:
                    need = max(need, 12 if big else 8)
                if d & c.srcc:
                    if c.srcc == d and c.passes == p.passes:
                        pass
                    else:
                        need = max(need, 10 if big else 6)
                elif d & c.w:
                    need = max(need, 12 if big else 8)
            elif c.kind in ("valu", "trans", "permlane", "readlane", "vmem", "ds", "dma"):
                if d & (c.r | c.w):
                    need = max(need, 12 if big else 8)
                if cv and (p.srcc & c.w):
                    need = max(need, 7 if big else 3)
        if p.kind == "salu" and "m0" in p.w and c.kind == "dma":
            need = max(need, 1)
        if p.store_data and (p.store_data & c.w):
            need = max(need, 2)
        return need

    def op(self, text, kind, w=(), r=(), passes=0, srcc=(), store_data=()):
        c = Ins(text, kind, w, r, passes, srcc, 1, store_data)
        need = 0
        dist = 0
        for p in reversed(self.hist):
            n = self._need(p, c)
            if n - dist > need:
                need = n - dist
            dist += p.states
            if dist >= 12:
                break
        if need > 0:
            self._nop(need)
        self.lines.append("    " + text)
        self.hist.append(c)
        if len(self.hist) > 40:
            self.hist = self.hist[-24:]
        self.n_ins += 1

    @staticmethod
    def _regs(x):
        if isinstance(x, (int, float)):
            return []
        x = x.strip()
        if x.startswith("-"):
            x = x[1:]
        if x.startswith("abs(") or x.startswith("|"):
            x = x.strip("|")
            if x.startswith("abs("):
                x = x[4:-1]
        if x in ("vcc", "m0", "exec", "scc"):
            return [x]
        if x and x[0] in "vs" and len(x) > 1 and (x[1].isdigit() or x[1] == "["):
            t = x[0]
            if x[1] == "[":
                a, b = x[2:-1].split(":")
                return ["%s%d" % (t, i) for i in range(int(a), int(b) + 1)]
            return [x]
        return []

    @staticmethod
    def _fmt(x):
        if isinstance(x, int):
            if -16 <= x <= 64:
                return str(x)
            return "0x%x" % (x & 0xFFFFFFFF)
        return str(x)

    def valu(self, name, dst, *srcs, mods="", rmw=False, extra_w=(), extra_r=()):
        kind = "trans" if name in TRANS else "valu"
        w = self._regs(dst) + list(extra_w)
        r = []
        for s in srcs:
            r += self._regs(s)
        if rmw:
            r += self._regs(dst)
        r += list(extra_r)
        text = "%s %s" % (name, ", ".join([self._fmt(dst)] + [self._fmt(s) for s in srcs]))
        if mods:
            text += " " + mods
        self.op(text, kind, w, r)

    def salu(self, name, dst, *srcs, scc_w=True):
        w = self._regs(dst)
        r = []
        for s in srcs:
            r += self._regs(s)
        text = "%s %s" % (name, ", ".join([self._fmt(dst)] + [self._fmt(s) for s in srcs]))
        self.op(text, "salu", w, r)

    def scmp(self, name, a, b):
        self.op("%s %s, %s" % (name, self._fmt(a), self._fmt(b)), "salu", [], self._regs(a) + self._regs(b))

    def branch(self, name, target):
        self.fence()
        self.lines.append("    %s %s" % (name, target))
        self.n_ins += 1

    def misc(self, text):
        self.op(text, "misc")

    def waitcnt(self, vm=None, lgkm=None):
        parts = []
        if vm is not None:
            assert 0 <= vm <= 63, vm
            parts.append("vmcnt(%d)" % vm)
        if lgkm is not None:
            assert 0 <= lgkm <= 15, lgkm
            parts.append("lgkmcnt(%d)" % lgkm)
        self.op("s_waitcnt " + " ".join(parts), "misc")

    def barrier(self):
        self.op("s_barrier", "misc")

    def mfma32(self, d, a, b, c=None):
        if c == "zero":
            ct, cr = "0", []
        else:
            cc = d if c is None else c
            ct, cr = V(cc, 16), vr(cc, 16)
        self.op("v_mfma_f32_32x32x16_bf16 %s, %s, %s, %s" % (V(d, 16), V(a, 4), V(b, 4), ct),
                "mfma", vr(d, 16), vr(a, 4) + vr(b, 4) + cr, passes=8, srcc=cr)

    def mfma16(self, d, a, b, c=None):
        if c == "zero":
            ct, cr = "0", []
        else:
            cc = d if c is None else c
            ct, cr = V(cc, 4), vr(cc, 4)
        self.op("v_mfma_f32_16x16x32_bf16 %s, %s, %s, %s" % (V(d, 4), V(a, 4), V(b, 4), ct),
                "mfma", vr(d, 4), vr(a, 4) + vr(b, 4) + cr, passes=4, srcc=cr)

    def ds_read(self, name, dst, cnt, addr, off=0):
        assert 0 <= off <= 65535, off
        t = "%s %s, %s" % (name, V(dst, cnt), V(addr))
        if off:
            t += " offset:%d" % off
        self.op(t, "ds", vr(dst, cnt), vr(addr))

    def ds_write(self, name, addr, src, cnt, off=0):
        assert 0 <= off <= 65535, off
        t = "%s %s, %s" % (name, V(addr), V(src, cnt))
        if off:
            t += " offset:%d" % off
        self.op(t, "ds", [], vr(addr) + vr(src, cnt))

    def buf_load(self, dst, cnt, voff, srd, soff=0, off=0, flags=""):
        assert 0 <= off <= 4095, off
        nm = {1: "buffer_load_dword", 2: "buffer_load_dwordx2", 4: "buffer_load_dwordx4"}[cnt]
        t = "%s %s, %s, %s, %s offen" % (nm, V(dst, cnt), V(voff), S(srd, 4), self._fmt(soff))
        if off:
            t += " offset:%d" % off
        if flags:
            t += " " + flags
        self.op(t, "vmem", vr(dst, cnt), vr(voff) + sr(srd, 4) + self._regs(soff))

    def buf_store(self, src, cnt, voff, srd, soff=0, off=0, flags=""):
        assert 0 <= off <= 4095, off
        nm = {1: "buffer_store_dword", 2: "buffer_store_dwordx2", 4: "buffer_store_dwordx4"}[cnt]
        t = "%s %s, %s, %s, %s offen" % (nm, V(src, cnt), V(voff), S(srd, 4), self._fmt(soff))
        if off:
            t += " offset:%d" % off
        if flags:
            t += " " + flags
        self.op(t, "vmem", [], vr(src, cnt) + vr(voff) + sr(srd, 4) + self._regs(soff),
                store_data=vr(src, cnt) if cnt >= 3 else ())

    def dma(self, voff, srd, soff=0, off=0, flags=""):
        assert 0 <= off <= 4095, off
        t = "buffer_load_dwordx4 %s, %s, %s offen" % (V(voff), S(srd, 4), self._fmt(soff))
        if off:
            t += " offset:%d" % off
        if flags:
            t += " " + flags
        t += " lds"
        self.op(t, "dma", [], vr(voff) + sr(srd, 4) + self._regs(soff) + ["m0"])

    def readfirstlane(self, sdst, vsrc):
        self.op("v_readfirstlane_b32 %s, %s" % (S(sdst), V(vsrc)), "readlane", sr(sdst), vr(vsrc))

    def permlane32_swap(self, a, b):
        self.op("v_permlane32_swap_b32 %s, %s" % (V(a), V(b)), "permlane", [V(a), V(b)], [V(a), V(b)])

    def s_load(self, sdst, cnt, base, off):
        nm = {1: "s_load_dword", 2: "s_load_dwordx2", 4: "s_load_dwordx4", 8: "s_load_dwordx8"}[cnt]
        self.op("%s %s, %s, %s" % (nm, S(sdst, cnt), S(base, 2), self._fmt(off) if not isinstance(off, int) else "0x%x" % off),
                "smem", sr(sdst, cnt), sr(base, 2) + self._regs(off))

    def srd(self, d, lo, hi, nbytes):
        self.salu("s_mov_b32", S(d), S(lo))
        self.salu("s_and_b32", S(d + 1), S(hi), 0xFFFF)
        self.salu("s_mov_b32", S(d + 2), nbytes)
        self.salu("s_mov_b32", S(d + 3), 0x20000)

    def text(self):
        return "\n".join(self.lines) + "\n"
```

```python
import math
import struct
import sys
import os

sys.path.insert(0, os.path.dirname(os.path.abspath(__file__)))
from asmlib import Asm, V, S, vr, sr

NAME = "concat_heads__gqa_block_cached__gqa_block_cached__near_ridge"

WQP_OFF = 0
WQP_SZ = 2 * 16 * 4 * 2 * 18 * 2 * 1024
WOP_OFF = WQP_OFF + WQP_SZ
WOP_SZ = 2 * 4 * 16 * 8 * 9 * 1024
Q_OFF = WOP_OFF + WOP_SZ
Q_SZ = 256 * 32768
O_OFF = Q_OFF + Q_SZ
O_SZ = 256 * 4 * 32768
WS_USED = O_OFF + O_SZ

SLOT = 16384
NSLOT = 5
X_LDS = NSLOT * SLOT
LDS_MAIN = X_LDS + 73728

SCALE = (128 ** -0.5) * math.log2(math.e)


def f32bits(x):
    return struct.unpack("<I", struct.pack("<f", x))[0]


HEADER = """; Kernarg layout for this problem (104 bytes, ptrs only, base s[0:1]):
;   offset   0: d_in[0] A_x  shape=(32, 64, 576) dtype=bfloat16
;   offset   8: d_in[1] A_k_cache  shape=(32, 16, 512, 128) dtype=bfloat16
;   offset  16: d_in[2] A_v_cache  shape=(32, 16, 512, 128) dtype=bfloat16
;   offset  24: d_in[3] A_wq  shape=(576, 4096) dtype=bfloat16
;   offset  32: d_in[4] A_wo  shape=(4096, 576) dtype=bfloat16
;   offset  40: d_in[5] B_x  shape=(32, 64, 576) dtype=bfloat16
;   offset  48: d_in[6] B_k_cache  shape=(32, 16, 512, 128) dtype=bfloat16
;   offset  56: d_in[7] B_v_cache  shape=(32, 16, 512, 128) dtype=bfloat16
;   offset  64: d_in[8] B_wq  shape=(576, 4096) dtype=bfloat16
;   offset  72: d_in[9] B_wo  shape=(4096, 576) dtype=bfloat16
;   offset  80: d_out     shape=(32, 64, 1152) dtype=bfloat16 (2 bytes/elem)
;   offset  88: d_debug   256 bytes
;   offset  96: d_ws      292028416 bytes workspace
; Generated by gen/gen.py (hand-written generator).
; @launch kernel=repack_kernel grid=(832,1,1) block=(256,1,1) lds=36864
; @launch kernel=%s_kernel grid=(256,1,1) block=(512,1,1) lds=%d
.amdgcn_target "amdgcn-amd-amdhsa--gfx950"
.text
""" % (NAME, LDS_MAIN)


def kd(name, vgpr, sgpr, accum):
    return """.amdhsa_kernel %s
  .amdhsa_next_free_vgpr %d
  .amdhsa_next_free_sgpr %d
  .amdhsa_accum_offset %d
  .amdhsa_group_segment_fixed_size 0
  .amdhsa_kernarg_size 104
  .amdhsa_user_sgpr_count 2
  .amdhsa_user_sgpr_kernarg_segment_ptr 1
  .amdhsa_system_sgpr_workgroup_id_x 1
.end_amdhsa_kernel
""" % (name, vgpr, sgpr, accum)


def add64(a, lo, hi, off_lo_reg):
    a.salu("s_add_u32", S(lo), S(lo), off_lo_reg)
    a.salu("s_addc_u32", S(hi), S(hi), 0)


def gen_repack(a):
    RS = 576
    a.raw(".globl repack_kernel\n.p2align 8\n.type repack_kernel,@function\nrepack_kernel:")
    a.scmp("s_cmp_ge_u32", "s2", 832)
    a.branch("s_cbranch_scc1", "Lrp_done")
    a.s_load(4, 4, 0, 24)
    a.s_load(8, 4, 0, 64)
    a.s_load(12, 2, 0, 96)
    a.valu("v_and_b32", "v1", 63, "v0")
    a.valu("v_lshrrev_b32", "v2", 6, "v0")
    a.valu("v_lshrrev_b32", "v3", 4, "v1")
    a.valu("v_bfe_u32", "v4", "v1", 2, 2)
    a.valu("v_and_b32", "v5", 3, "v1")
    a.valu("v_lshlrev_b32", "v6", 4, "v1")
    a.waitcnt(lgkm=0)
    a.scmp("s_cmp_ge_u32", "s2", 576)
    a.branch("s_cbranch_scc1", "Lrp_wo")
    a.salu("s_lshr_b32", "s14", "s2", 5)
    a.salu("s_and_b32", "s15", "s2", 31)
    a.salu("s_and_b32", "s16", "s2", 15)
    a.scmp("s_cmp_ge_u32", "s15", 16)
    a.salu("s_cselect_b32", "s4", "s8", "s4")
    a.salu("s_cselect_b32", "s5", "s9", "s5")
    a.srd(20, 4, 5, 576 * 8192)
    a.srd(24, 12, 13, WQP_SZ)
    a.salu("s_lshl_b32", "s17", "s14", 18)
    a.salu("s_lshl_b32", "s18", "s16", 9)
    a.salu("s_add_u32", "s17", "s17", "s18")
    a.valu("v_lshrrev_b32", "v7", 5, "v0")
    a.valu("v_and_b32", "v8", 31, "v0")
    a.valu("v_lshlrev_b32", "v8", 4, "v8")
    a.valu("v_lshl_add_u32", "v9", "v7", 13, "v8")
    a.valu("v_mul_u32_u24", "v10", RS, "v7")
    a.valu("v_add_u32", "v10", "v10", "v8")
    for i in range(4):
        a.buf_load(16 + 4 * i, 4, 9, 20, "s17")
        if i < 3:
            a.salu("s_add_u32", "s17", "s17", 65536)
    for i in range(4):
        a.waitcnt(vm=3 - i)
        a.ds_write("ds_write_b128", 10, 16 + 4 * i, 4, off=i * 8 * RS)
    a.valu("v_lshl_add_u32", "v11", "v3", 3, "v4")
    a.valu("v_mul_u32_u24", "v11", RS, "v11")
    a.valu("v_lshl_add_u32", "v11", "v2", 7, "v11")
    a.valu("v_lshl_add_u32", "v11", "v5", 4, "v11")
    a.valu("v_mul_u32_u24", "v12", 73728, "v2")
    a.valu("v_add_u32", "v12", "v12", "v6")
    a.salu("s_mul_i32", "s17", "s15", 294912)
    a.salu("s_lshl_b32", "s18", "s14", 11)
    a.salu("s_add_u32", "s17", "s17", "s18")
    a.salu("s_add_u32", "s18", "s17", 36864)
    a.waitcnt(lgkm=0)
    a.barrier()
    for ps in range(2):
        for f in range(2):
            d = 16 + 4 * (2 * ps + f)
            for t in range(2):
                a.ds_read("ds_read_b64_tr_b16", d + 2 * t, 2, 11, off=t * 4 * RS + 64 * ps + 8 * f)
    for ps in range(2):
        for f in range(2):
            d = 16 + 4 * (2 * ps + f)
            a.waitcnt(lgkm=6 - 2 * (2 * ps + f))
            a.buf_store(d, 4, 12, 24, "s17" if ps == 0 else "s18", off=f * 1024)
    a.branch("s_branch", "Lrp_done")
    a.label("Lrp_wo")
    a.salu("s_sub_u32", "s14", "s2", 576)
    a.salu("s_and_b32", "s15", "s14", 127)
    a.salu("s_lshr_b32", "s16", "s14", 7)
    a.scmp("s_cmp_eq_u32", "s16", 1)
    a.salu("s_cselect_b32", "s6", "s10", "s6")
    a.salu("s_cselect_b32", "s7", "s11", "s7")
    a.srd(20, 6, 7, 4096 * 1152)
    a.salu("s_add_u32", "s12", "s12", WOP_OFF)
    a.salu("s_addc_u32", "s13", "s13", 0)
    a.srd(24, 12, 13, WOP_SZ)
    a.salu("s_mul_i32", "s17", "s15", 36864)
    a.valu("v_lshlrev_b32", "v9", 4, "v0")
    for i in range(9):
        a.buf_load(16 + 4 * i, 4, 9, 20, "s17")
        if i < 8:
            a.salu("s_add_u32", "s17", "s17", 4096)
    for i in range(9):
        a.waitcnt(vm=8 - i)
        a.ds_write("ds_write_b128", 9, 16 + 4 * i, 4, off=i * 4096)
    a.valu("v_lshrrev_b32", "v7", 1, "v3")
    a.valu("v_and_b32", "v8", 1, "v3")
    a.valu("v_lshl_add_u32", "v10", "v7", 4, "v4")
    a.valu("v_lshl_add_u32", "v10", "v8", 2, "v10")
    a.valu("v_mul_u32_u24", "v10", 1152, "v10")
    a.valu("v_mul_u32_u24", "v11", 288, "v2")
    a.valu("v_add_u32", "v10", "v10", "v11")
    a.valu("v_lshl_add_u32", "v11", "v5", 4, "v10")
    a.valu("v_lshl_add_u32", "v13", "v5", 3, "v10")
    a.salu("s_mov_b32", "s18", 16 * 73728)
    a.valu("v_mul_lo_u32", "v12", "v2", "s18")
    a.valu("v_add_u32", "v12", "v12", "v6")
    a.salu("s_mul_i32", "s17", "s16", 64 * 73728)
    a.salu("s_mul_i32", "s18", "s15", 9216)
    a.salu("s_add_u32", "s17", "s17", "s18")
    a.waitcnt(lgkm=0)
    a.barrier()
    for nt in range(9):
        d = 16 + 4 * nt
        for t in range(2):
            if nt < 8:
                a.ds_read("ds_read_b64_tr_b16", d + 2 * t, 2, 11, off=t * 8 * 1152 + 64 * (nt >> 1) + 8 * (nt & 1))
            else:
                a.ds_read("ds_read_b64_tr_b16", d + 2 * t, 2, 13, off=t * 8 * 1152 + 256)
        if nt == 6:
            a.waitcnt(lgkm=0)
    a.waitcnt(lgkm=0)
    for nt in range(9):
        d = 16 + 4 * nt
        a.buf_store(d, 4, 12, 24, "s17", off=(nt & 3) * 1024)
        if (nt & 3) == 3:
            a.salu("s_add_u32", "s17", "s17", 4096)
    a.label("Lrp_done")
    a.raw("    s_endpgm")


P_WEIGHTS = [1.0, 1.0, 2.6, 1.0]


def bar_positions(nwork):
    w = P_WEIGHTS * 2
    tot = sum(w)
    pos = []
    acc = 0.0
    for x in w:
        pos.append(int(round(acc / tot * nwork)))
        acc += x
    return pos


class VmQueue:
    def __init__(self, a):
        self.a = a
        self.q = []

    def push(self, tag):
        self.q.append(tag)

    def wait(self, tag):
        if tag not in self.q:
            return
        i = len(self.q) - 1 - self.q[::-1].index(tag)
        n = len(self.q) - 1 - i
        self.a.waitcnt(vm=n)
        self.q = self.q[i + 1:]

    def drain(self):
        self.a.waitcnt(vm=0)
        self.q = []


def gen_main(a):
    K = NAME + "_kernel"
    a.raw(".globl %s\n.p2align 8\n.type %s,@function\n%s:" % (K, K, K))
    a.scmp("s_cmp_ge_u32", "s2", 256)
    a.branch("s_cbranch_scc1", "Lm_done")
    a.s_load(36, 4, 0, 0)
    a.s_load(40, 2, 0, 16)
    a.s_load(44, 4, 0, 40)
    a.s_load(48, 2, 0, 56)
    a.s_load(52, 4, 0, 80)
    a.s_load(56, 2, 0, 96)
    a.valu("v_lshrrev_b32", "v1", 6, "v0")
    a.readfirstlane(3, 1)
    a.valu("v_and_b32", "v0", 63, "v0")
    a.salu("s_bfe_u32", "s4", "s2", 0x10002)
    a.salu("s_and_b32", "s5", "s2", 3)
    a.salu("s_lshr_b32", "s6", "s2", 3)
    a.salu("s_lshl_b32", "s7", "s4", 5)
    a.salu("s_add_u32", "s7", "s7", "s6")
    a.waitcnt(lgkm=0)
    a.scmp("s_cmp_eq_u32", "s4", 1)
    for i in range(6):
        a.salu("s_cselect_b32", S(36 + i), S(44 + i), S(36 + i))
    a.salu("s_lshl_b32", "s58", "s7", 2)
    a.salu("s_add_u32", "s24", "s54", "s58")
    a.salu("s_addc_u32", "s25", "s55", 0)
    a.salu("s_lshl_b32", "s58", "s7", 2)
    a.salu("s_add_u32", "s58", "s58", "s5")
    a.salu("s_lshl_b32", "s59", "s58", 15)
    a.salu("s_add_u32", "s59", "s59", Q_OFF)
    a.salu("s_add_u32", "s60", "s56", "s59")
    a.salu("s_addc_u32", "s61", "s57", 0)
    a.srd(16, 60, 61, 32768)
    a.scmp("s_cmp_ge_u32", "s3", 4)
    a.branch("s_cbranch_scc1", "Lp_start")
    gen_A(a)
    gen_P(a)
    a.label("Lm_done")
    a.raw("    s_endpgm")


A_VDK = 2
A_VDV = 6
A_KB = 7
A_VB = 8
A_VQ = 9
A_VO = 10
A_M = 11
A_L = 12
A_NM = 14
A_AL = 16
A_AD = 18
A_T0 = 26
A_T1 = 27
A_T2 = 28
A_T3 = 29
A_Q = 32
A_QN = 64
A_O = 96
A_S = 160
A_F = 224
A_NF = 8
SA_K = 8
SA_V = 12
SA_Q = 16
SA_O = 20
SA_KN = 26
SA_VN = 27
SA_WS = 28
SA_RS = 29
SA_U = 30
SA_OO = 31
SA_C = 32
SA_T = 34
SA_WLIM = 35


def a_dma_tile(a, is_k):
    a.salu("s_mov_b32", "m0", S(SA_WS))
    for i in range(4):
        if is_k:
            a.dma(A_VDK + i, SA_K, S(SA_KN), off=1024 * i, flags="nt")
        else:
            a.dma(A_VDV, SA_V, S(SA_VN), off=1024 * i, flags="nt")
    if is_k:
        a.salu("s_add_u32", S(SA_KN), S(SA_KN), SLOT)
    else:
        a.salu("s_add_u32", S(SA_VN), S(SA_VN), SLOT)
    a.salu("s_add_u32", S(SA_WS), S(SA_WS), SLOT)
    a.scmp("s_cmp_ge_u32", S(SA_WS), S(SA_WLIM))
    a.salu("s_cselect_b32", S(SA_T), NSLOT * SLOT, 0)
    a.salu("s_sub_u32", S(SA_WS), S(SA_WS), S(SA_T))


def a_adv_read(a):
    a.salu("s_add_u32", S(SA_RS), S(SA_RS), SLOT)
    a.scmp("s_cmp_ge_u32", S(SA_RS), NSLOT * SLOT)
    a.salu("s_cselect_b32", S(SA_RS), 0, S(SA_RS))


def a_qk(a, hf):
    a.valu("v_add_u32", V(A_AD), S(SA_RS), V(A_KB))
    for s in range(1, 8):
        a.valu("v_xor_b32", V(A_AD + s), s << 5, V(A_AD))
    seq = [(s, kt) for s in range(8) for kt in range(2)]
    n = len(seq)
    depth = A_NF - 1

    def rd(i):
        s, kt = seq[i]
        a.ds_read("ds_read_b128", A_F + 4 * (i % A_NF), 4, A_AD + s, off=kt * 8192)

    for i in range(min(depth, n)):
        rd(i)
    for i in range(n):
        s, kt = seq[i]
        issued = min(n, i + depth)
        a.waitcnt(lgkm=issued - 1 - i)
        d = A_S + 16 * (2 * hf + kt)
        a.mfma32(d, A_F + 4 * (i % A_NF), A_Q + 4 * s, "zero" if s == 0 else None)
        if i + depth < n:
            rd(i + depth)
    a_adv_read(a)


def a_pv(a, hf, first):
    a.valu("v_add_u32", V(A_AD), S(SA_RS), V(A_VB))
    for dt in range(1, 4):
        a.valu("v_xor_b32", V(A_AD + dt), dt << 6, V(A_AD))
    seq = [(kk, dt) for kk in range(4) for dt in range(4)]
    n = len(seq)
    depth = A_NF - 1

    def rd(i):
        kk, dt = seq[i]
        for t in range(2):
            a.ds_read("ds_read_b64_tr_b16", A_F + 4 * (i % A_NF) + 2 * t, 2, A_AD + dt,
                      off=(16 * kk + 8 * t) * 256)

    pre = min(depth, n)
    return seq, n, depth, rd, pre


def a_pv_run(a, hf, first, st):
    seq, n, depth, rd, pre = st
    for i in range(n):
        kk, dt = seq[i]
        issued = min(n, i + depth)
        a.waitcnt(lgkm=min(15, 2 * (issued - 1 - i)))
        a.mfma32(A_O + 16 * dt, A_F + 4 * (i % A_NF), A_S + 16 * hf + 4 * kk,
                 "zero" if (first and kk == 0) else None)
        if i + depth < n:
            rd(i + depth)
    a_adv_read(a)


def a_softmax(a, first):
    S0 = A_S
    a.valu("v_max3_f32", V(A_T0), V(S0), V(S0 + 1), V(S0 + 2))
    a.valu("v_max3_f32", V(A_T1), V(S0 + 3), V(S0 + 4), V(S0 + 5))
    i = 6
    tog = 0
    while i + 1 < 64:
        t = A_T0 if tog == 0 else A_T1
        a.valu("v_max3_f32", V(t), V(t), V(S0 + i), V(S0 + i + 1))
        i += 2
        tog ^= 1
    assert i == 64
    if first:
        a.valu("v_max_f32", V(A_T0), V(A_T0), V(A_T1))
    else:
        a.valu("v_max3_f32", V(A_T0), V(A_T0), V(A_T1), V(A_M))
    a.valu("v_mov_b32", V(A_T1), V(A_T0))
    a.permlane32_swap(A_T0, A_T1)
    a.valu("v_max_f32", V(A_T0), V(A_T0), V(A_T1))
    if not first:
        a.valu("v_sub_f32", V(A_T1), V(A_M), V(A_T0))
        a.valu("v_mul_f32", V(A_T1), S(SA_C), V(A_T1))
        a.valu("v_exp_f32", V(A_AL), V(A_T1))
    a.valu("v_mul_f32", V(A_NM), S(SA_C), V(A_T0))
    a.valu("v_mov_b32", V(A_M), V(A_T0))
    a.valu("v_sub_f32", V(A_NM), 0, V(A_NM))
    a.valu("v_mov_b32", V(A_NM + 1), V(A_NM))
    if not first:
        a.valu("v_mov_b32", V(A_AL + 1), V(A_AL))
        a.valu("v_pk_mul_f32", V(A_L, 2), V(A_L, 2), V(A_AL, 2))
    for i in range(0, 64, 2):
        a.valu("v_pk_fma_f32", V(S0 + i, 2), V(S0 + i, 2), S(SA_C, 2), V(A_NM, 2))
    for i in range(0, 64, 2):
        a.valu("v_exp_f32", V(S0 + i), V(S0 + i))
        a.valu("v_exp_f32", V(S0 + i + 1), V(S0 + i + 1))
        if not first and i < 64:
            a.valu("v_pk_mul_f32", V(A_O + i, 2), V(A_O + i, 2), V(A_AL, 2))
        if i >= 2:
            k = i - 2
            if first and k == 0:
                a.valu("v_mov_b32", V(A_L), V(S0))
                a.valu("v_mov_b32", V(A_L + 1), V(S0 + 1))
            else:
                a.valu("v_pk_add_f32", V(A_L, 2), V(A_L, 2), V(S0 + k, 2))
            a.valu("v_cvt_pk_bf16_f32", V(S0 + k // 2), V(S0 + k), V(S0 + k + 1))
    a.valu("v_pk_add_f32", V(A_L, 2), V(A_L, 2), V(S0 + 62, 2))
    a.valu("v_cvt_pk_bf16_f32", V(S0 + 31), V(S0 + 62), V(S0 + 63))


def gen_A(a):
    a.comment("================ A waves ================")
    a.misc("s_setprio 2")
    a.salu("s_lshl_b32", "s59", "s6", 4)
    a.salu("s_lshl_b32", "s60", "s5", 2)
    a.salu("s_add_u32", "s59", "s59", "s60")
    a.salu("s_lshl_b32", "s59", "s59", 17)
    a.salu("s_add_u32", "s38", "s38", "s59")
    a.salu("s_addc_u32", "s39", "s39", 0)
    a.salu("s_add_u32", "s40", "s40", "s59")
    a.salu("s_addc_u32", "s41", "s41", 0)
    a.srd(SA_K, 38, 39, 4 * 131072)
    a.srd(SA_V, 40, 41, 4 * 131072)
    a.salu("s_lshl_b32", "s59", "s58", 17)
    a.salu("s_add_u32", "s59", "s59", O_OFF)
    a.salu("s_add_u32", "s60", "s56", "s59")
    a.salu("s_addc_u32", "s61", "s57", 0)
    a.srd(SA_O, 60, 61, 131072)
    a.salu("s_mov_b32", S(SA_C), f32bits(SCALE))
    a.salu("s_mov_b32", S(SA_C + 1), f32bits(SCALE))
    a.valu("v_lshrrev_b32", "v1", 4, "v0")
    a.valu("v_and_b32", V(A_T0), 15, "v0")
    a.salu("s_lshl_b32", "s59", "s3", 12)
    a.valu("v_lshl_add_u32", V(A_T1), "v1", 8, "s59")
    for i in range(4):
        a.valu("v_add_u32", V(A_T2), 4 * i, "v1")
        a.valu("v_xor_b32", V(A_T2), V(A_T2), V(A_T0))
        a.valu("v_lshl_add_u32", V(A_VDK + i), V(A_T2), 4, V(A_T1))
    a.valu("v_lshlrev_b32", V(A_T2), 2, "v1")
    a.valu("v_xor_b32", V(A_T2), V(A_T2), V(A_T0))
    a.valu("v_lshl_add_u32", V(A_VDV), V(A_T2), 4, V(A_T1))
    a.valu("v_lshrrev_b32", V(A_T2), 5, "v0")
    a.valu("v_xor_b32", V(A_T3), V(A_T2), V(A_T0))
    a.valu("v_and_b32", V(A_KB), 31, "v0")
    a.valu("v_lshlrev_b32", V(A_KB), 8, V(A_KB))
    a.valu("v_lshl_add_u32", V(A_KB), V(A_T3), 4, V(A_KB))
    a.valu("v_bfe_u32", V(A_T3), "v0", 2, 2)
    a.valu("v_lshl_add_u32", V(A_VB), V(A_T2), 2, V(A_T3))
    a.valu("v_lshlrev_b32", V(A_VB), 8, V(A_VB))
    a.valu("v_lshl_add_u32", V(A_VB), V(A_T3), 6, V(A_VB))
    a.valu("v_and_b32", V(A_T3), 1, "v1")
    a.valu("v_lshl_add_u32", V(A_VB), V(A_T3), 5, V(A_VB))
    a.valu("v_and_b32", V(A_AD), 3, "v0")
    a.valu("v_lshl_add_u32", V(A_VB), V(A_AD), 3, V(A_VB))
    a.salu("s_lshl_b32", "s59", "s3", 13)
    a.valu("v_lshl_add_u32", V(A_VQ), "v0", 4, "s59")
    a.salu("s_lshr_b32", "s59", "s3", 1)
    a.salu("s_lshl_b32", "s59", "s59", 14)
    a.salu("s_and_b32", "s60", "s3", 1)
    a.salu("s_lshl_b32", "s60", "s60", 11)
    a.salu("s_add_u32", "s59", "s59", "s60")
    a.valu("v_lshl_add_u32", V(A_VO), V(A_T0), 4, "s59")
    a.valu("v_lshl_add_u32", V(A_VO), V(A_T3), 10, V(A_VO))
    a.valu("v_lshl_add_u32", V(A_VO), V(A_T2), 8, V(A_VO))
    a.salu("s_mov_b32", S(SA_KN), 0)
    a.salu("s_mov_b32", S(SA_VN), 0)
    a.salu("s_lshl_b32", S(SA_WS), "s3", 12)
    a.salu("s_add_u32", S(SA_WLIM), S(SA_WS), NSLOT * SLOT)
    a.salu("s_mov_b32", S(SA_RS), 0)
    a.salu("s_mov_b32", S(SA_U), 0)
    a.salu("s_mov_b32", S(SA_OO), 0)
    for t in range(5):
        a_dma_tile(a, (t & 3) < 2)
    for _ in range(9):
        a.barrier()
    a.salu("s_movk_i32", S(SA_T), 4096)
    for s in range(8):
        a.buf_load(A_QN + 4 * s, 4, A_VQ, SA_Q, 0 if s < 4 else S(SA_T), off=(s & 3) * 1024, flags="sc1")
    a.waitcnt(vm=0)

    a.label("La_unit")
    for t in range(16):
        c, pos = t >> 2, t & 3
        a.comment("---- A step %d ----" % t)
        n = 20 if t in (13, 14, 15, 0, 1, 2, 3) else 12
        a.waitcnt(vm=n)
        a.barrier()
        if t == 12:
            a.salu("s_movk_i32", S(SA_T), 4096)
            for s in range(8):
                a.buf_load(A_QN + 4 * s, 4, A_VQ, SA_Q, 0 if s < 4 else S(SA_T), off=(s & 3) * 1024, flags="sc1")
        if t == 0:
            a.scmp("s_cmp_eq_u32", S(SA_U), 0)
            a.branch("s_cbranch_scc1", "La_skip0")
            a_dma_tile(a, True)
            a.label("La_skip0")
            for i in range(32):
                a.valu("v_mov_b32", V(A_Q + i), V(A_QN + i))
        else:
            a_dma_tile(a, pos < 2)
        if t == 4:
            a.scmp("s_cmp_eq_u32", S(SA_U), 0)
            a.branch("s_cbranch_scc1", "La_skip4")
            a.scmp("s_cmp_lg_u32", "s3", 0)
            a.branch("s_cbranch_scc1", "La_skip4")
            a_publish(a)
            a.label("La_skip4")
        if pos < 2:
            a_qk(a, pos)
        else:
            hf = pos - 2
            st = a_pv(a, hf, c == 0)
            if hf == 0:
                for i in range(st[4]):
                    st[3](i)
                a_softmax(a, c == 0)
            else:
                for i in range(st[4]):
                    st[3](i)
            a_pv_run(a, hf, c == 0 and hf == 0, st)
    a.valu("v_add_f32", V(A_T0), V(A_L), V(A_L + 1))
    a.valu("v_mov_b32", V(A_T1), V(A_T0))
    a.permlane32_swap(A_T0, A_T1)
    a.valu("v_add_f32", V(A_T0), V(A_T0), V(A_T1))
    a.valu("v_rcp_f32", V(A_AL), V(A_T0))
    a.valu("v_mov_b32", V(A_AL + 1), V(A_AL))
    for dt in range(4):
        for kk in range(2):
            b = A_O + 16 * dt + 8 * kk
            d = A_S + 8 * dt + 4 * kk
            for i in range(0, 8, 2):
                a.valu("v_pk_mul_f32", V(b + i, 2), V(b + i, 2), V(A_AL, 2))
            for i in range(0, 8, 2):
                a.valu("v_cvt_pk_bf16_f32", V(d + i // 2), V(b + i), V(b + i + 1))
            a.buf_store(d, 4, A_VO, SA_O, S(SA_OO), off=kk * 512, flags="sc1")
        a.salu("s_add_u32", S(SA_OO), S(SA_OO), 4096)
    a.salu("s_add_u32", S(SA_OO), S(SA_OO), 32768 - 16384)
    a.salu("s_add_u32", S(SA_U), S(SA_U), 1)
    a.scmp("s_cmp_lt_u32", S(SA_U), 4)
    a.branch("s_cbranch_scc1", "La_unit")
    a.waitcnt(vm=0)
    a.barrier()
    a.scmp("s_cmp_lg_u32", "s3", 0)
    a.branch("s_cbranch_scc1", "Lm_done")
    a_publish(a)
    a.branch("s_branch", "Lm_done")


def a_publish(a):
    a.salu("s_lshl_b32", S(SA_T), "s5", 3)
    a.salu("s_lshl_b32", S(SA_T), 1, S(SA_T))
    a.valu("v_mov_b32", V(A_T2), S(SA_T))
    a.valu("v_mov_b32", V(A_T3), 0)
    a.salu("s_mov_b64", "exec", 1)
    a.op("global_atomic_add %s, %s, s[24:25]" % (V(A_T3), V(A_T2)), "vmem", [], [V(A_T3), V(A_T2), "s24", "s25"])
    a.salu("s_mov_b64", "exec", -1)


P_L16 = 1
P_X0 = 2
P_X1 = 3
P_QS = 4
P_T0 = 5
P_T1 = 6
P_T2 = 7
P_ACC = 8
P_AQ = 152
P_XF = 184
P_WF = 216
P_WD = 5
P_OF = 152
SP_X = 8
SP_WQ = 12
SP_Q = 16
SP_O = 20
SP_WO = 28
SP_OUT = 32
SP_IT = 26
SP_W = 27
SP_A = 62
SP_B = 63
SP_T = 64
SP_T2 = 65
SP_8K = 66
SP_SPIN = 67


def p_xread(a, buf, ks):
    for qt in range(4):
        fr = ks * 4 + qt
        if fr < 64:
            a.ds_read("ds_read_b128", P_XF + 16 * buf + 4 * qt, 4, P_X0, off=fr * 1024)
        else:
            a.ds_read("ds_read_b128", P_XF + 16 * buf + 4 * qt, 4, P_X1, off=(fr - 64) * 1024)


def gen_qproj(a):
    vq = VmQueue(a)
    steps = [(ps, ks) for ps in range(2) for ks in range(18)]
    n = len(steps)
    bars = bar_positions(n)
    assert bars[0] == 0
    a.barrier()
    a.salu("s_mul_i32", S(SP_A), S(SP_IT), 294912)

    def wload(i):
        for f in range(2):
            a.buf_load(P_WF + 4 * ((2 * i + f) % (2 * P_WD)), 4, P_L16, SP_WQ, S(SP_A), off=(i & 1) * 2048 + f * 1024)
            vq.push(("w", i, f))
        if i & 1:
            a.salu("s_add_u32", S(SP_A), S(SP_A), 4096)

    for i in range(P_WD):
        wload(i)
    p_xread(a, 0, 0)
    for i in range(n):
        ps, ks = steps[i]
        if i > 0:
            for _ in range(bars.count(i)):
                a.barrier()
        if i + 1 < n:
            p_xread(a, (i + 1) & 1, steps[i + 1][1])
            a.waitcnt(lgkm=4)
        else:
            a.waitcnt(lgkm=0)
        vq.wait(("w", i, 1))
        for f in range(2):
            for qt in range(4):
                a.mfma16(P_AQ + 16 * f + 4 * qt, P_WF + 4 * ((2 * i + f) % (2 * P_WD)),
                         P_XF + 16 * (i & 1) + 4 * qt, "zero" if ks == 0 else None)
        if i + P_WD < n:
            wload(i + P_WD)
        if ks == 17:
            for qt in range(4):
                a0 = P_AQ + 4 * qt
                a1 = P_AQ + 16 + 4 * qt
                a.valu("v_cvt_pk_bf16_f32", V(a0), V(a0), V(a0 + 1))
                a.valu("v_cvt_pk_bf16_f32", V(a0 + 1), V(a0 + 2), V(a0 + 3))
                a.valu("v_cvt_pk_bf16_f32", V(a0 + 2), V(a1), V(a1 + 1))
                a.valu("v_cvt_pk_bf16_f32", V(a0 + 3), V(a1 + 2), V(a1 + 3))
                a.buf_store(a0, 4, P_QS, SP_Q, 0 if qt < 2 else S(SP_8K), off=ps * 2048 + (qt & 1) * 256)
                vq.push(("st", ps, qt))


def gen_oproj(a):
    vq = VmQueue(a)
    units = [(ks, nt) for ks in range(8) for nt in range(9)]
    n = len(units)
    bars = bar_positions(n)
    a.barrier()
    a.salu("s_sub_u32", S(SP_T2), S(SP_IT), 1)
    a.valu("v_mov_b32", V(P_T0), 0)
    a.salu("s_mov_b32", S(SP_SPIN), 0)
    a.label("Lp_poll")
    a.op("global_load_dword %s, %s, s[24:25] sc1" % (V(P_T1), V(P_T0)), "vmem", [V(P_T1)], [V(P_T0), "s24", "s25"])
    a.waitcnt(vm=0)
    a.readfirstlane(SP_T, P_T1)
    a.salu("s_lshl_b32", S(SP_A), S(SP_W), 3)
    a.salu("s_lshr_b32", S(SP_T), S(SP_T), S(SP_A))
    a.salu("s_and_b32", S(SP_T), S(SP_T), 255)
    a.scmp("s_cmp_ge_u32", S(SP_T), S(SP_T2))
    a.branch("s_cbranch_scc1", "Lp_polled")
    a.misc("s_sleep 4")
    a.salu("s_add_u32", S(SP_SPIN), S(SP_SPIN), 1)
    a.scmp("s_cmp_lt_u32", S(SP_SPIN), 400000)
    a.branch("s_cbranch_scc1", "Lp_poll")
    a.label("Lp_polled")
    a.salu("s_sub_u32", S(SP_T2), S(SP_IT), 2)
    a.salu("s_mul_i32", S(SP_A), S(SP_T2), 73728)
    a.salu("s_lshl_b32", S(SP_B), S(SP_T2), 15)

    state = {"wo": 0}

    def wo_load(ks, nt):
        fi = ks * 9 + nt
        assert fi == state["wo"]
        a.buf_load(P_OF + 52 * (ks & 1) + 4 * nt, 4, P_L16, SP_WO, S(SP_A), off=(fi & 3) * 1024)
        vq.push(("wo", ks, nt))
        state["wo"] += 1
        if (fi & 3) == 3:
            a.salu("s_add_u32", S(SP_A), S(SP_A), 4096)

    def o_load(ks):
        for qt in range(4):
            a.buf_load(P_OF + 52 * (ks & 1) + 36 + 4 * qt, 4, P_L16, SP_O, S(SP_B), off=qt * 1024, flags="sc1")
            vq.push(("o", ks, qt))
        a.salu("s_add_u32", S(SP_B), S(SP_B), 4096)

    for ks in range(2):
        o_load(ks)
        for nt in range(9):
            wo_load(ks, nt)
    for i in range(n):
        ks, nt = units[i]
        if i > 0:
            for _ in range(bars.count(i)):
                a.barrier()
        base = P_OF + 52 * (ks & 1)
        if nt == 0:
            vq.wait(("o", ks, 3))
        vq.wait(("wo", ks, nt))
        for qt in range(4):
            a.mfma16(P_ACC + 16 * nt + 4 * qt, base + 4 * nt, base + 36 + 4 * qt)
        if ks + 2 < 8:
            wo_load(ks + 2, nt)
            if nt == 8:
                o_load(ks + 2)


def gen_P(a):
    a.label("Lp_start")
    a.salu("s_sub_u32", S(SP_W), "s3", 4)
    a.salu("s_movk_i32", S(SP_8K), 8192)
    a.salu("s_mul_i32", "s59", "s6", 73728)
    a.salu("s_add_u32", "s36", "s36", "s59")
    a.salu("s_addc_u32", "s37", "s37", 0)
    a.srd(SP_X, 36, 37, 73728)
    a.salu("s_lshl_b32", "s59", "s4", 4)
    a.salu("s_lshl_b32", "s60", "s5", 2)
    a.salu("s_add_u32", "s59", "s59", "s60")
    a.salu("s_mul_i32", "s59", "s59", 294912)
    a.salu("s_mul_i32", "s60", S(SP_W), 73728)
    a.salu("s_add_u32", "s59", "s59", "s60")
    a.salu("s_add_u32", "s60", "s56", "s59")
    a.salu("s_addc_u32", "s61", "s57", 0)
    a.srd(SP_WQ, 60, 61, 3 * 294912 + 73728)
    a.salu("s_lshl_b32", "s59", "s4", 2)
    a.salu("s_add_u32", "s59", "s59", "s5")
    a.salu("s_lshl_b32", "s59", "s59", 4)
    a.salu("s_lshl_b32", "s60", S(SP_W), 2)
    a.salu("s_add_u32", "s59", "s59", "s60")
    a.salu("s_mul_i32", "s59", "s59", 73728)
    a.salu("s_add_u32", "s59", "s59", WOP_OFF)
    a.salu("s_add_u32", "s60", "s56", "s59")
    a.salu("s_addc_u32", "s61", "s57", 0)
    a.srd(SP_WO, 60, 61, 4 * 73728)
    a.salu("s_lshl_b32", "s59", "s7", 2)
    a.salu("s_add_u32", "s59", "s59", S(SP_W))
    a.salu("s_lshl_b32", "s59", "s59", 17)
    a.salu("s_add_u32", "s59", "s59", O_OFF)
    a.salu("s_add_u32", "s60", "s56", "s59")
    a.salu("s_addc_u32", "s61", "s57", 0)
    a.srd(SP_O, 60, 61, 131072)
    a.srd(SP_OUT, 52, 53, 32 * 64 * 2304)
    a.valu("v_lshlrev_b32", V(P_L16), 4, "v0")
    a.valu("v_add_u32", V(P_X0), X_LDS, V(P_L16))
    a.valu("v_add_u32", V(P_X1), 65536, V(P_X0))
    a.valu("v_lshrrev_b32", V(P_T0), 4, "v0")
    a.valu("v_and_b32", V(P_T1), 15, "v0")
    a.salu("s_lshr_b32", "s59", S(SP_W), 1)
    a.salu("s_lshl_b32", "s59", "s59", 14)
    a.salu("s_and_b32", "s60", S(SP_W), 1)
    a.salu("s_lshl_b32", "s60", "s60", 12)
    a.salu("s_add_u32", "s59", "s59", "s60")
    a.valu("v_lshl_add_u32", V(P_QS), V(P_T1), 4, "s59")
    a.valu("v_lshl_add_u32", V(P_QS), V(P_T0), 9, V(P_QS))
    a.valu("v_mul_u32_u24", V(P_T2), 1152, V(P_T1))
    a.valu("v_lshl_add_u32", V(P_T2), V(P_T0), 4, V(P_T2))
    a.salu("s_mul_i32", S(SP_T), S(SP_W), 18)
    for i in range(18):
        a.salu("s_and_b32", S(SP_A), S(SP_T), 3)
        a.salu("s_mul_i32", S(SP_A), S(SP_A), 18432)
        a.salu("s_lshr_b32", S(SP_B), S(SP_T), 2)
        a.salu("s_lshl_b32", S(SP_B), S(SP_B), 6)
        a.salu("s_add_u32", S(SP_A), S(SP_A), S(SP_B))
        a.salu("s_lshl_b32", S(SP_B), S(SP_T), 10)
        a.salu("s_add_u32", S(SP_B), S(SP_B), X_LDS)
        a.salu("s_mov_b32", "m0", S(SP_B))
        a.dma(P_T2, SP_X, S(SP_A))
        a.salu("s_add_u32", S(SP_T), S(SP_T), 1)
    for i in range(144):
        a.valu("v_mov_b32", V(P_ACC + i), 0)
    a.salu("s_mov_b32", S(SP_IT), 0)
    a.waitcnt(vm=0)

    a.label("Lp_loop")
    a.scmp("s_cmp_ge_u32", S(SP_IT), 4)
    a.branch("s_cbranch_scc1", "Lp_noq")
    gen_qproj(a)
    a.scmp("s_cmp_ge_u32", S(SP_IT), 2)
    a.branch("s_cbranch_scc1", "Lp_o")
    a.waitcnt(vm=0)
    a.barrier()
    a.scmp("s_cmp_eq_u32", S(SP_IT), 0)
    a.branch("s_cbranch_scc1", "Lp_next")
    for _ in range(7):
        a.barrier()
    a.branch("s_branch", "Lp_next")
    a.label("Lp_noq")
    a.scmp("s_cmp_eq_u32", S(SP_IT), 5)
    a.branch("s_cbranch_scc1", "Lp_o")
    for _ in range(8):
        a.barrier()
    a.label("Lp_o")
    gen_oproj(a)
    a.label("Lp_next")
    a.salu("s_add_u32", S(SP_IT), S(SP_IT), 1)
    a.scmp("s_cmp_le_u32", S(SP_IT), 5)
    a.branch("s_cbranch_scc1", "Lp_loop")

    a.salu("s_mul_i32", S(SP_T), S(SP_W), 36864)
    a.valu("v_add_u32", V(P_T0), S(SP_T), V(P_L16))
    for nt in range(9):
        for qt in range(4):
            a.ds_write("ds_write_b128", P_T0, P_ACC + 16 * nt + 4 * qt, 4, off=(nt * 4 + qt) * 1024)
    a.salu("s_lshl_b32", S(SP_T), S(SP_W), 10)
    a.valu("v_add_u32", V(P_T0), S(SP_T), V(P_L16))
    a.valu("v_add_u32", V(P_T1), 36864, V(P_T0))
    a.valu("v_add_u32", V(P_X0), 2 * 36864, V(P_T0))
    a.valu("v_add_u32", V(P_X1), 3 * 36864, V(P_T0))
    a.waitcnt(lgkm=0)
    a.barrier()
    R = P_OF
    for src in range(4):
        for nt in range(9):
            base = (P_T0, P_T1, P_X0, P_X1)[src]
            a.ds_read("ds_read_b128", P_ACC + 36 * src + 4 * nt, 4, base, off=nt * 4096)
        if src & 1:
            a.waitcnt(lgkm=0)
    for nt in range(9):
        for r in range(0, 4, 2):
            x = P_ACC + 4 * nt + r
            a.valu("v_pk_add_f32", V(x, 2), V(x, 2), V(x + 36, 2))
            a.valu("v_pk_add_f32", V(x + 72, 2), V(x + 72, 2), V(x + 108, 2))
            a.valu("v_pk_add_f32", V(x, 2), V(x, 2), V(x + 72, 2))
    a.valu("v_lshrrev_b32", V(P_T0), 8, V(P_L16))
    a.valu("v_bfe_u32", V(P_T1), V(P_L16), 4, 4)
    a.salu("s_lshl_b32", S(SP_T), S(SP_W), 4)
    a.valu("v_add_u32", V(P_T1), S(SP_T), V(P_T1))
    a.valu("v_mul_u32_u24", V(P_T1), 2304, V(P_T1))
    a.valu("v_lshl_add_u32", V(P_T2), V(P_T0), 3, V(P_T1))
    a.valu("v_lshl_add_u32", V(P_T1), V(P_T0), 4, V(P_T1))
    a.salu("s_mul_i32", S(SP_A), "s6", 147456)
    a.salu("s_mul_i32", S(SP_B), "s4", 1152)
    a.salu("s_add_u32", S(SP_A), S(SP_A), S(SP_B))
    a.salu("s_mul_i32", S(SP_B), "s5", 288)
    a.salu("s_add_u32", S(SP_A), S(SP_A), S(SP_B))
    for tt in range(4):
        a0 = P_ACC + 8 * tt
        d = P_OF + 4 * tt
        a.valu("v_cvt_pk_bf16_f32", V(d), V(a0), V(a0 + 1))
        a.valu("v_cvt_pk_bf16_f32", V(d + 1), V(a0 + 2), V(a0 + 3))
        a.valu("v_cvt_pk_bf16_f32", V(d + 2), V(a0 + 4), V(a0 + 5))
        a.valu("v_cvt_pk_bf16_f32", V(d + 3), V(a0 + 6), V(a0 + 7))
        a.buf_store(d, 4, P_T1, SP_OUT, S(SP_A), off=64 * tt)
    a0 = P_ACC + 32
    d = P_OF + 16
    a.valu("v_cvt_pk_bf16_f32", V(d), V(a0), V(a0 + 1))
    a.valu("v_cvt_pk_bf16_f32", V(d + 1), V(a0 + 2), V(a0 + 3))
    a.buf_store(d, 2, P_T2, SP_OUT, S(SP_A), off=256)


def main():
    out = sys.argv[1] if len(sys.argv) > 1 else "cdna_kernels/%s.s" % NAME
    a = Asm()
    a.raw(HEADER)
    gen_repack(a)
    a.hist = []
    gen_main(a)
    a.raw('.section .rodata,"a"\n.p2align 6')
    a.raw(kd("repack_kernel", 64, 32, 64))
    a.raw(".p2align 6")
    a.raw(kd(NAME + "_kernel", 256, 80, 256))
    open(out, "w").write(a.text())
    print("wrote %s: %d instructions, %d nop states" % (out, a.n_ins, a.nops_inserted))


if __name__ == "__main__":
    main()
```

```python
import math
import struct
import sys
import os

sys.path.insert(0, os.path.dirname(os.path.abspath(__file__)))
from asmlib import Asm, V, S, vr, sr

NAME = "concat_heads__gqa_block_cached__gqa_block_cached__near_ridge"

WOP_OFF = 0
WOP_SZ = 2 * 4 * 16 * 16 * 5 * 1024
Q_OFF = WOP_OFF + WOP_SZ
Q_SZ = 256 * 4 * 32768
O_OFF = Q_OFF + Q_SZ
O_SZ = 64 * 16 * 18432
CNT_OFF = O_OFF + O_SZ
WS_USED = CNT_OFF + 64 * 128

SLOT = 16384
NSLOT = int(os.environ.get("NSLOT", "7"))
OBUF = NSLOT * SLOT
FLG = OBUF + 32768
LDS_MAIN = FLG + 128
F_CD, F_CL, F_OW, F_OF, F_XC = 0, 16, 32, 48, 64
LDS_Q = 131072

SCALE = (128 ** -0.5) * math.log2(math.e)
THRESH = 8.0
SPIN_CAP = 300000

DIAG = bool(int(os.environ.get("DIAG", "0")))
EXP = os.environ.get("EXP", "")
DIAG_OFF = 128 << 20


def f32bits(x):
    return struct.unpack("<I", struct.pack("<f", x))[0]


def stamp(a, acc=None):
    if not DIAG:
        return
    a.op("s_memtime s[80:81]", "smem", ["s80", "s81"], [])
    a.waitcnt(lgkm=0)
    if acc is not None:
        a.salu("s_sub_u32", "s83", "s80", "s82")
        a.salu("s_add_u32", S(84 + acc), S(84 + acc), "s83")
    a.salu("s_mov_b32", "s82", "s80")


def diag_init(a):
    if not DIAG:
        return
    for i in range(8):
        a.salu("s_mov_b32", S(84 + i), 0)
    stamp(a)
    a.salu("s_mov_b32", "s92", "s80")


def diag_dump(a, tmpv):
    if not DIAG:
        return
    stamp(a)
    a.salu("s_sub_u32", "s93", "s80", "s92")
    a.salu("s_lshl_b32", "s83", "s2", 3)
    a.salu("s_add_u32", "s83", "s83", "s3")
    a.salu("s_lshl_b32", "s83", "s83", 6)
    a.salu("s_add_u32", "s83", "s83", DIAG_OFF)
    a.salu("s_add_u32", "s94", "s56", "s83")
    a.salu("s_addc_u32", "s95", "s57", 0)
    a.valu("v_mov_b32", V(tmpv), 0)
    a.salu("s_mov_b64", "exec", 1)
    for i in range(10):
        a.valu("v_mov_b32", V(tmpv + 1), S(84 + i))
        a.op("global_store_dword %s, %s, s[94:95] offset:%d" % (V(tmpv), V(tmpv + 1), 4 * i), "vmem", [],
             [V(tmpv), V(tmpv + 1), "s94", "s95"])
        a.waitcnt(vm=0)
    a.salu("s_mov_b64", "exec", -1)


HEADER = """; Kernarg layout for this problem (104 bytes, ptrs only, base s[0:1]):
;   offset   0: d_in[0] A_x  shape=(32, 64, 576) dtype=bfloat16
;   offset   8: d_in[1] A_k_cache  shape=(32, 16, 512, 128) dtype=bfloat16
;   offset  16: d_in[2] A_v_cache  shape=(32, 16, 512, 128) dtype=bfloat16
;   offset  24: d_in[3] A_wq  shape=(576, 4096) dtype=bfloat16
;   offset  32: d_in[4] A_wo  shape=(4096, 576) dtype=bfloat16
;   offset  40: d_in[5] B_x  shape=(32, 64, 576) dtype=bfloat16
;   offset  48: d_in[6] B_k_cache  shape=(32, 16, 512, 128) dtype=bfloat16
;   offset  56: d_in[7] B_v_cache  shape=(32, 16, 512, 128) dtype=bfloat16
;   offset  64: d_in[8] B_wq  shape=(576, 4096) dtype=bfloat16
;   offset  72: d_in[9] B_wo  shape=(4096, 576) dtype=bfloat16
;   offset  80: d_out     shape=(32, 64, 1152) dtype=bfloat16 (2 bytes/elem)
;   offset  88: d_debug   256 bytes
;   offset  96: d_ws      292028416 bytes workspace
; Generated by gen/gen9.py (hand-written generator).
; @launch kernel=qproj_kernel grid=(256,1,1) block=(512,1,1) lds=%d
; @launch kernel=%s_kernel grid=(256,1,1) block=(512,1,1) lds=%d
.amdgcn_target "amdgcn-amd-amdhsa--gfx950"
.text
""" % (LDS_Q, NAME, LDS_MAIN)


def kd(name, vgpr, sgpr, accum):
    return """.amdhsa_kernel %s
  .amdhsa_next_free_vgpr %d
  .amdhsa_next_free_sgpr %d
  .amdhsa_accum_offset %d
  .amdhsa_group_segment_fixed_size 0
  .amdhsa_kernarg_size 104
  .amdhsa_user_sgpr_count 2
  .amdhsa_user_sgpr_kernarg_segment_ptr 1
  .amdhsa_system_sgpr_workgroup_id_x 1
.end_amdhsa_kernel
""" % (name, vgpr, sgpr, accum)


G_VX = 2
G_VW = 6
G_BA = 10
G_AA = 14
G_T0 = 16
G_T1 = 17
G_T2 = 18
G_T3 = 19
G_L16 = 20
G_PF = 21
G_PD = 22
G_CB = 23
G_WO = 24
G_AF = 48
G_BF = 64
G_ACC = 128
PF_PER_STAGE = int(os.environ.get("PFS", "0"))
GLF = os.environ.get("GLF", "")


def gen_qproj_kernel(a):
    a.raw(".globl qproj_kernel\n.p2align 8\n.type qproj_kernel,@function\nqproj_kernel:")
    a.scmp("s_cmp_ge_u32", "s2", 256)
    a.branch("s_cbranch_scc1", "Lg_done")
    a.s_load(36, 8, 0, 0)
    a.s_load(44, 2, 0, 32)
    a.s_load(48, 8, 0, 40)
    a.s_load(56, 2, 0, 72)
    a.s_load(58, 2, 0, 96)
    a.valu("v_lshrrev_b32", "v1", 6, "v0")
    a.readfirstlane(3, 1)
    a.valu("v_lshlrev_b32", V(G_T3), 4, "v0")
    a.valu("v_and_b32", "v0", 63, "v0")
    a.valu("v_lshlrev_b32", V(G_L16), 4, "v0")
    a.salu("s_bfe_u32", "s4", "s2", 0x10002)
    a.salu("s_and_b32", "s5", "s2", 3)
    a.salu("s_bfe_u32", "s6", "s2", 0x20003)
    a.salu("s_lshr_b32", "s7", "s2", 5)
    a.salu("s_lshl_b32", "s26", "s5", 2)
    a.salu("s_add_u32", "s26", "s26", "s6")
    a.waitcnt(lgkm=0)
    a.scmp("s_cmp_eq_u32", "s4", 1)
    for i in range(10):
        a.salu("s_cselect_b32", S(36 + i), S(48 + i), S(36 + i))
    a.salu("s_mul_i32", "s27", "s7", 256 * 1152)
    a.salu("s_add_u32", "s36", "s36", "s27")
    a.salu("s_addc_u32", "s37", "s37", 0)
    a.srd(8, 36, 37, 256 * 1152)
    a.srd(12, 42, 43, 576 * 8192)
    a.valu("v_lshrrev_b32", V(G_T0), 3, "v0")
    a.salu("s_lshl_b32", "s27", "s3", 5)
    a.valu("v_add_u32", V(G_T0), "s27", V(G_T0))
    a.valu("v_mul_u32_u24", V(G_T0), 1152, V(G_T0))
    a.valu("v_and_b32", V(G_T1), 7, "v0")
    a.valu("v_lshrrev_b32", V(G_T2), 4, "v0")
    a.valu("v_xor_b32", V(G_T1), V(G_T1), V(G_T2))
    for ii in range(4):
        if ii & 1:
            a.valu("v_xor_b32", V(G_T2), 4, V(G_T1))
            src = G_T2
        else:
            src = G_T1
        a.valu("v_lshl_add_u32", V(G_VX + ii), V(src), 4, V(G_T0))
        if ii:
            a.valu("v_add_u32", V(G_VX + ii), ii * (8 * 1152 - 1024), V(G_VX + ii))
    a.valu("v_lshrrev_b32", V(G_T2), 5, "v0")
    a.salu("s_lshl_b32", "s27", "s3", 3)
    a.valu("v_add_u32", V(G_T0), "s27", V(G_T2))
    a.valu("v_lshlrev_b32", V(G_T0), 13, V(G_T0))
    a.valu("v_and_b32", V(G_T1), 31, "v0")
    a.valu("v_lshlrev_b32", V(G_T2), 2, V(G_T2))
    a.valu("v_xor_b32", V(G_T1), V(G_T1), V(G_T2))
    for ii in range(4):
        if ii & 1:
            a.valu("v_xor_b32", V(G_T2), 8, V(G_T1))
            src = G_T2
        else:
            src = G_T1
        a.valu("v_lshl_add_u32", V(G_VW + ii), V(src), 4, V(G_T0))
        if ii:
            a.valu("v_add_u32", V(G_VW + ii), ii * (2 * 8192 - 1024), V(G_VW + ii))
    a.salu("s_mov_b32", "s28", 0)
    a.salu("s_lshl_b32", "s29", "s26", 9)
    a.salu("s_lshl_b32", "s30", "s3", 12)

    def dma_stage():
        a.salu("s_mov_b32", "m0", "s30")
        for ii in range(4):
            a.dma(G_VX + ii, 8, "s28", off=1024 * ii, flags=GLF)
        a.salu("s_add_u32", "s31", "s30", 32768)
        a.salu("s_mov_b32", "m0", "s31")
        for ii in range(4):
            a.dma(G_VW + ii, 12, "s29", off=1024 * ii, flags=GLF)
        a.salu("s_add_u32", "s28", "s28", 128)
        a.salu("s_add_u32", "s29", "s29", 64 * 8192)
        a.salu("s_xor_b32", "s30", "s30", 65536)

    dma_stage()
    a.salu("s_lshl_b32", "s32", "s5", 5)
    a.salu("s_lshr_b32", "s33", "s2", 3)
    a.salu("s_add_u32", "s32", "s32", "s33")
    a.salu("s_mul_i32", "s33", "s32", 36864)
    a.salu("s_add_u32", "s44", "s44", "s33")
    a.salu("s_addc_u32", "s45", "s45", 0)
    a.srd(16, 44, 45, 36864)
    a.salu("s_mov_b32", "s33", 0)
    for i in range(5):
        a.buf_load(G_WO + 4 * i, 4, G_T3, 16, "s33", flags="nt")
        if i < 4:
            a.salu("s_add_u32", "s33", "s33", 8192)
    a.salu("s_lshr_b32", "s33", "s2", 3)
    a.salu("s_lshl_b32", "s33", "s33", 4)
    a.salu("s_lshl_b32", "s34", "s5", 2)
    a.salu("s_add_u32", "s33", "s33", "s34")
    a.salu("s_lshl_b32", "s33", "s33", 17)
    a.scmp("s_cmp_ge_u32", "s3", 4)
    a.salu("s_cselect_b32", "s38", "s40", "s38")
    a.salu("s_cselect_b32", "s39", "s41", "s39")
    a.salu("s_add_u32", "s38", "s38", "s33")
    a.salu("s_addc_u32", "s39", "s39", 0)
    a.srd(20, 38, 39, 4 * 131072)
    a.valu("v_lshlrev_b32", V(G_PF), 6, "v0")
    a.salu("s_and_b32", "s34", "s3", 3)
    a.salu("s_lshl_b32", "s34", "s34", 12)
    a.salu("s_and_b32", "s27", "s3", 1)
    a.salu("s_lshr_b32", "s35", "s3", 1)
    a.valu("v_and_b32", V(G_T0), 31, "v0")
    a.valu("v_bfe_u32", V(G_T1), "v0", 1, 3)
    a.valu("v_lshrrev_b32", V(G_T2), 5, "v0")
    a.valu("v_xor_b32", V(G_T1), V(G_T1), V(G_T2))
    a.valu("v_lshlrev_b32", V(G_T0), 7, V(G_T0))
    a.valu("v_lshl_add_u32", V(G_T0), V(G_T1), 4, V(G_T0))
    a.salu("s_lshl_b32", "s33", "s27", 14)
    a.valu("v_add_u32", V(G_BA), "s33", V(G_T0))
    for ks in range(1, 4):
        a.valu("v_xor_b32", V(G_BA + ks), ks << 5, V(G_BA))
    a.valu("v_bfe_u32", V(G_CB), "v0", 4, 1)
    a.valu("v_lshlrev_b32", V(G_CB), 5, V(G_CB))
    a.valu("v_and_b32", V(G_T0), 1, "v0")
    a.valu("v_lshl_add_u32", V(G_CB), V(G_T0), 4, V(G_CB))
    a.valu("v_bfe_u32", V(G_T0), "v0", 1, 1)
    a.valu("v_lshl_add_u32", V(G_CB), V(G_T0), 3, V(G_CB))
    a.valu("v_bfe_u32", V(G_T1), "v0", 2, 2)
    a.salu("s_lshl_b32", "s33", "s35", 7)
    a.valu("v_add_u32", V(G_T0), "s33", V(G_CB))
    a.valu("v_lshlrev_b32", V(G_AA), 6, V(G_T1))
    a.valu("v_xor_b32", V(G_T0), V(G_T0), V(G_AA))
    a.valu("v_lshl_add_u32", V(G_AA), V(G_T2), 3, V(G_T1))
    a.valu("v_lshl_add_u32", V(G_AA), V(G_AA), 9, V(G_T0))
    a.valu("v_add_u32", V(G_AA), 32768, V(G_AA))
    a.valu("v_xor_b32", V(G_AA + 1), 64, V(G_AA))
    for i in range(128):
        a.valu("v_mov_b32", V(G_ACC + i), 0)
    a.salu("s_mov_b32", "s33", 0)
    a.waitcnt(vm=5)

    a.label("Lg_loop")
    a.barrier()
    a.scmp("s_cmp_eq_u32", "s33", 8)
    a.branch("s_cbranch_scc1", "Lg_nodma")
    dma_stage()
    for _ in range(PF_PER_STAGE):
        a.buf_load(G_PD, 1, G_PF, 20, "s34")
        a.salu("s_add_u32", "s34", "s34", 16384)
    a.label("Lg_nodma")

    def rd(ks):
        b = ks & 1
        for dtl in range(2):
            for t in range(2):
                a.ds_read("ds_read_b64_tr_b16", G_AF + 8 * b + 4 * dtl + 2 * t, 2, G_AA + dtl, off=(16 * ks + 4 * t) * 512)
        for qt in range(4):
            a.ds_read("ds_read_b128", G_BF + 16 * b + 4 * qt, 4, G_BA + ks, off=4096 * qt)

    rd(0)
    for ks in range(4):
        if ks < 3:
            rd(ks + 1)
            a.waitcnt(lgkm=8)
        else:
            a.waitcnt(lgkm=0)
        b = ks & 1
        for dtl in range(2):
            for qt in range(4):
                a.mfma32(G_ACC + 64 * dtl + 16 * qt, G_AF + 8 * b + 4 * dtl, G_BF + 16 * b + 4 * qt)
    for ks in range(4):
        a.valu("v_xor_b32", V(G_BA + ks), 65536, V(G_BA + ks))
    for dtl in range(2):
        a.valu("v_xor_b32", V(G_AA + dtl), 65536, V(G_AA + dtl))
    a.waitcnt(vm=PF_PER_STAGE)
    a.salu("s_add_u32", "s33", "s33", 1)
    a.scmp("s_cmp_lt_u32", "s33", 9)
    a.branch("s_cbranch_scc1", "Lg_loop")

    a.valu("v_add_u32", V(G_T3), 65536, V(G_T3))
    for i in range(5):
        a.ds_write("ds_write_b128", G_T3, G_WO + 4 * i, 4, off=i * 8192)
    a.salu("s_lshl_b32", "s28", "s4", 5)
    a.salu("s_lshl_b32", "s29", "s7", 2)
    a.salu("s_add_u32", "s28", "s28", "s29")
    a.salu("s_lshl_b32", "s29", "s27", 1)
    a.salu("s_add_u32", "s28", "s28", "s29")
    a.salu("s_lshl_b32", "s28", "s28", 2)
    a.salu("s_add_u32", "s28", "s28", "s5")
    a.salu("s_lshl_b32", "s28", "s28", 17)
    a.salu("s_lshl_b32", "s29", "s6", 15)
    a.salu("s_add_u32", "s28", "s28", "s29")
    a.salu("s_lshr_b32", "s29", "s35", 1)
    a.salu("s_lshl_b32", "s29", "s29", 14)
    a.salu("s_add_u32", "s28", "s28", "s29")
    a.salu("s_and_b32", "s29", "s35", 1)
    a.salu("s_lshl_b32", "s29", "s29", 12)
    a.salu("s_add_u32", "s28", "s28", "s29")
    a.salu("s_add_u32", "s60", "s58", Q_OFF)
    a.salu("s_addc_u32", "s61", "s59", 0)
    a.srd(8, 60, 61, Q_SZ)
    a.salu("s_mov_b32", "s31", f32bits(SCALE))
    for qt in range(4):
        a.salu("s_add_u32", "s29", "s28", (qt >> 1) * 4 * 131072 + (qt & 1) * 8192)
        for dtl in range(2):
            for hf in range(2):
                b = G_ACC + 64 * dtl + 16 * qt + 8 * hf
                for i in range(8):
                    a.valu("v_mul_f32", V(b + i), "s31", V(b + i))
                for i in range(0, 8, 2):
                    a.valu("v_cvt_pk_bf16_f32", V(b + i // 2), V(b + i), V(b + i + 1))
                a.buf_store(b, 4, G_L16, 8, "s29", off=dtl * 2048 + hf * 1024)
    a.salu("s_add_u32", "s60", "s58", CNT_OFF)
    a.salu("s_addc_u32", "s61", "s59", 0)
    a.srd(16, 60, 61, 64 * 128)
    a.salu("s_lshl_b32", "s28", "s2", 7)
    a.scmp("s_cmp_lg_u32", "s3", 0)
    a.salu("s_cselect_b32", "s28", 0x10000000, "s28")
    a.valu("v_and_b32", V(G_T0), 31, "v0")
    a.valu("v_lshlrev_b32", V(G_T0), 2, V(G_T0))
    a.valu("v_mov_b32", V(G_T1), 0)
    a.buf_store(G_T1, 1, G_T0, 16, "s28")
    a.srd(12, 58, 59, WOP_SZ)
    a.valu("v_lshrrev_b32", V(G_T2), 5, "v0")
    a.valu("v_bfe_u32", V(G_T1), "v0", 2, 2)
    a.valu("v_lshl_add_u32", V(G_T0), V(G_T2), 2, V(G_T1))
    a.valu("v_mul_u32_u24", V(G_T0), 1152, V(G_T0))
    a.valu("v_add_u32", V(G_T0), V(G_T0), V(G_CB))
    a.salu("s_mul_i32", "s28", "s27", 16 * 1152)
    a.salu("s_add_u32", "s28", "s28", 65536)
    a.salu("s_add_u32", "s29", "s35", 1)
    a.salu("s_lshr_b32", "s29", "s29", 1)
    a.salu("s_lshl_b32", "s30", "s35", 2)
    a.salu("s_add_u32", "s29", "s29", "s30")
    a.salu("s_lshl_b32", "s29", "s29", 6)
    a.salu("s_add_u32", "s29", "s29", "s28")
    a.valu("v_add_u32", V(G_T1), "s29", V(G_T0))
    a.salu("s_lshr_b32", "s29", "s35", 1)
    a.salu("s_mul_i32", "s29", "s29", 9 * 64)
    a.salu("s_add_u32", "s29", "s29", 256)
    a.salu("s_add_u32", "s29", "s29", "s28")
    a.valu("v_add_u32", V(G_T2), "s29", V(G_T0))
    a.salu("s_lshl_b32", "s28", "s4", 2)
    a.salu("s_add_u32", "s28", "s28", "s35")
    a.salu("s_lshl_b32", "s28", "s28", 7)
    a.salu("s_add_u32", "s28", "s28", "s32")
    a.salu("s_mul_i32", "s28", "s28", 10240)
    a.salu("s_mul_i32", "s29", "s27", 5120)
    a.salu("s_add_u32", "s28", "s28", "s29")
    a.salu("s_add_u32", "s29", "s28", 4096)
    a.waitcnt(lgkm=0)
    a.barrier()
    for ct in range(5):
        for t in range(2):
            if ct < 4:
                a.ds_read("ds_read_b64_tr_b16", G_AF + 4 * ct + 2 * t, 2, G_T1, off=8 * t * 1152 + 64 * ct)
            else:
                a.ds_read("ds_read_b64_tr_b16", G_AF + 4 * ct + 2 * t, 2, G_T2, off=8 * t * 1152)
    for ct in range(5):
        a.waitcnt(lgkm=8 - 2 * ct)
        a.buf_store(G_AF + 4 * ct, 4, G_L16, 12, "s28" if ct < 4 else "s29", off=(ct & 3) * 1024)
    a.label("Lg_done")
    a.raw("    s_endpgm")


class Queue:
    def __init__(self, a, kind):
        self.a = a
        self.kind = kind
        self.q = []

    def push(self, tag):
        self.q.append(tag)

    def wait(self, tag):
        if tag not in self.q:
            return
        i = len(self.q) - 1 - self.q[::-1].index(tag)
        n = len(self.q) - 1 - i
        if self.kind == "vm":
            self.a.waitcnt(vm=n)
        else:
            self.a.waitcnt(lgkm=min(n, 15))
        self.q = self.q[i + 1:]

    def drain(self):
        if self.kind == "vm":
            self.a.waitcnt(vm=0)
        else:
            self.a.waitcnt(lgkm=0)
        self.q = []


_uid = [0]


def uid(prefix):
    _uid[0] += 1
    return "%s_%d" % (prefix, _uid[0])


def lds_post(a, vaddr, vcnt, inc=1):
    a.valu("v_add_u32", V(vcnt), inc, V(vcnt))
    a.salu("s_mov_b64", "exec", 1)
    a.ds_write("ds_write_b32", vaddr, vcnt, 1)
    a.salu("s_mov_b64", "exec", -1)


def lds_min4(a, v4, stmp):
    a.valu("v_min3_u32", V(v4), V(v4), V(v4 + 1), V(v4 + 2))
    a.valu("v_min_u32", V(v4), V(v4), V(v4 + 3))
    a.readfirstlane(stmp, v4)


def lds_check(a, vflg, off, v4, stmp, sneed, scnt, tail):
    lspin, lback = uid("Lspin"), uid("Lback")

    def emit(a):
        a.label(lspin)
        a.salu("s_mov_b32", S(scnt), 0)
        lp = lspin + "_l"
        a.label(lp)
        a.misc("s_sleep 1")
        a.ds_read("ds_read_b128", v4, 4, vflg, off=off)
        a.waitcnt(lgkm=0)
        lds_min4(a, v4, stmp)
        a.scmp("s_cmp_ge_u32", S(stmp), S(sneed))
        a.branch("s_cbranch_scc1", lback)
        a.salu("s_add_u32", S(scnt), S(scnt), 1)
        a.scmp("s_cmp_lt_u32", S(scnt), SPIN_CAP)
        a.branch("s_cbranch_scc1", lp)
        a.branch("s_branch", lback)

    tail.append(emit)
    lds_min4(a, v4, stmp)
    a.scmp("s_cmp_lt_u32", S(stmp), S(sneed))
    a.lines.append("    s_cbranch_scc1 %s" % lspin)
    a.n_ins += 1
    a.lines.append(lback + ":")


def gen_main(a):
    K = NAME + "_kernel"
    a.raw(".globl %s\n.p2align 8\n.type %s,@function\n%s:" % (K, K, K))
    a.scmp("s_cmp_ge_u32", "s2", 256)
    a.branch("s_cbranch_scc1", "Lm_done")
    a.s_load(36, 4, 0, 0)
    a.s_load(40, 2, 0, 16)
    a.s_load(44, 4, 0, 40)
    a.s_load(48, 2, 0, 56)
    a.s_load(52, 4, 0, 80)
    a.s_load(56, 2, 0, 96)
    a.valu("v_lshrrev_b32", "v1", 6, "v0")
    a.readfirstlane(3, 1)
    a.valu("v_and_b32", "v0", 63, "v0")
    a.valu("v_and_b32", "v1", 31, "v0")
    a.valu("v_lshlrev_b32", "v1", 2, "v1")
    a.valu("v_add_u32", "v1", FLG, "v1")
    a.valu("v_mov_b32", "v2", 0)
    a.ds_write("ds_write_b32", 1, 2, 1)
    a.salu("s_bfe_u32", "s4", "s2", 0x10002)
    a.salu("s_and_b32", "s5", "s2", 3)
    a.salu("s_lshr_b32", "s6", "s2", 3)
    a.salu("s_lshl_b32", "s7", "s4", 5)
    a.salu("s_add_u32", "s7", "s7", "s6")
    a.waitcnt(lgkm=0)
    a.barrier()
    a.scmp("s_cmp_eq_u32", "s4", 1)
    for i in range(6):
        a.salu("s_cselect_b32", S(36 + i), S(44 + i), S(36 + i))
    a.salu("s_lshl_b32", "s58", "s7", 7)
    a.salu("s_add_u32", "s58", "s58", CNT_OFF)
    a.salu("s_add_u32", "s24", "s56", "s58")
    a.salu("s_addc_u32", "s25", "s57", 0)
    a.salu("s_lshl_b32", "s58", "s7", 2)
    a.salu("s_add_u32", "s58", "s58", "s5")
    a.salu("s_lshl_b32", "s59", "s58", 17)
    a.salu("s_add_u32", "s59", "s59", Q_OFF)
    a.salu("s_add_u32", "s60", "s56", "s59")
    a.salu("s_addc_u32", "s61", "s57", 0)
    a.srd(16, 60, 61, 131072)
    a.scmp("s_cmp_ge_u32", "s3", 4)
    a.branch("s_cbranch_scc1", "Lp_start")
    gen_A(a)
    gen_P(a)
    a.label("Lm_done")
    a.raw("    s_endpgm")


A_KB = 2
A_VB = 3
A_QA = 4
A_VO = 5
A_M = 6
A_L0 = 7
A_L1 = 8
A_FLG = 9
A_ONE = 10
A_CNT = 11
A_FW = 12
A_AD = 14
A_T0 = 22
A_T1 = 23
A_T2 = 24
A_T3 = 25
A_CL = 26
A_NM = 32
A_Q = 48
A_O = 80
A_S = 144
A_F = 208
A_NF = 8
SA_O = 20
SA_RS = 29
SA_U = 30
SA_OO = 31
SA_C = 32
SA_NL = 33
SA_T = 34
SA_SP = 63
SA_T2 = 64
SA_THR = 66
KVF = os.environ.get("KVF", "nt")
OSF = os.environ.get("OSF", "sc1")
WOF = os.environ.get("WOF", "")
OLF = os.environ.get("OLF", "sc1")
BURST = int(os.environ.get("BURST", "3"))
NTILE = 72


def a_adv(a):
    a.salu("s_add_u32", S(SA_RS), S(SA_RS), SLOT)
    a.scmp("s_cmp_ge_u32", S(SA_RS), NSLOT * SLOT)
    a.salu("s_cselect_b32", S(SA_RS), 0, S(SA_RS))


def a_top(a, lq, tail):
    stamp(a, 3)
    lq.drain()
    lds_check(a, A_FLG, F_CL, A_CL, SA_T, SA_NL, SA_SP, tail)
    stamp(a, 0)
    a.salu("s_add_u32", S(SA_NL), S(SA_NL), 1)


def a_end(a, lq, inc=1):
    lds_post(a, A_FW, A_CNT, inc)
    lq.push("cdadd")
    a.ds_read("ds_read_b128", A_CL, 4, A_FLG, off=F_CL)
    lq.push("clread")
    a_adv(a)


def a_qstep(a, tail):
    lq = Queue(a, "lgkm")
    lq.push("clread")
    a.salu("s_add_u32", S(SA_NL), S(SA_NL), 1)
    a_top(a, lq, tail)
    a.salu("s_mov_b32", S(SA_T2), S(SA_RS))
    a_adv(a)
    a.scmp("s_cmp_ge_u32", "s3", 2)
    a.salu("s_cselect_b32", S(SA_T2), S(SA_RS), S(SA_T2))
    a.valu("v_add_u32", V(A_AD), S(SA_T2), V(A_QA))
    for s in range(8):
        a.ds_read("ds_read_b128", A_Q + 4 * s, 4, A_AD, off=1024 * s)
    a_unit_init(a)
    a.waitcnt(lgkm=0)
    a_end(a, lq, 2)


def a_step(a, pos, tail):
    lq = Queue(a, "lgkm")
    lq.push("clread")
    a_top(a, lq, tail)
    is_k = pos < 2
    hf = pos & 1
    if is_k:
        a.valu("v_add_u32", V(A_AD), S(SA_RS), V(A_KB))
        for s in range(1, 8):
            a.valu("v_xor_b32", V(A_AD + s), s << 5, V(A_AD))
        seq = [(s, kt) for s in range(8) for kt in range(2)]
    else:
        a.valu("v_add_u32", V(A_AD), S(SA_RS), V(A_VB))
        for dt in range(1, 4):
            a.valu("v_xor_b32", V(A_AD + dt), dt << 6, V(A_AD))
        seq = [(kk, dt) for kk in range(4) for dt in range(4)]
    n = 16
    depth = A_NF - 1

    def rd(i):
        f = A_F + 4 * (i % A_NF)
        if is_k:
            s, kt = seq[i]
            a.ds_read("ds_read_b128", f, 4, A_AD + s, off=kt * 8192)
            lq.push(("f", i))
        else:
            kk, dt = seq[i]
            for t in range(2):
                a.ds_read("ds_read_b64_tr_b16", f + 2 * t, 2, A_AD + dt, off=(16 * kk + 8 * t) * 256)
                lq.push(("f", i) if t else ("f0", i))

    if "nocomp" in EXP:
        a_end(a, lq)
        return
    for i in range(depth):
        rd(i)
    if pos == 2:
        a_softmax(a, lambda: None)
    ended = False
    for i in range(n):
        lq.wait(("f", i))
        if not ended and not any(isinstance(x, tuple) for x in lq.q) and i + depth >= n:
            a_end(a, lq)
            ended = True
        f = A_F + 4 * (i % A_NF)
        if is_k:
            s, kt = seq[i]
            d = A_S + 16 * (2 * hf + kt)
            a.mfma32(d, f, A_Q + 4 * s, A_NM if s == 0 else None)
        else:
            kk, dt = seq[i]
            a.mfma32(A_O + 16 * dt, f, A_S + 16 * hf + 4 * kk)
        if i + depth < n:
            rd(i + depth)
        if i == n - 4 and not ended:
            lq.wait(("f", n - 1))
            a_end(a, lq)
            ended = True
    assert ended


def a_softmax(a, mid):
    S0 = A_S
    a.valu("v_max3_f32", V(A_T0), V(S0), V(S0 + 1), V(S0 + 2))
    a.valu("v_max3_f32", V(A_T1), V(S0 + 3), V(S0 + 4), V(S0 + 5))
    i = 6
    tog = 0
    while i + 1 < 64:
        t = A_T0 if tog == 0 else A_T1
        a.valu("v_max3_f32", V(t), V(t), V(S0 + i), V(S0 + i + 1))
        i += 2
        tog ^= 1
    a.valu("v_max_f32", V(A_T0), V(A_T0), V(A_T1))
    a.valu("v_mov_b32", V(A_T1), V(A_T0))
    a.permlane32_swap(A_T0, A_T1)
    a.valu("v_max_f32", V(A_T0), V(A_T0), V(A_T1))
    lfast = uid("Lfast")
    a.valu("v_cmp_lt_f32", "vcc", S(SA_THR), V(A_T0), extra_w=["vcc"])
    a.branch("s_cbranch_vccz", lfast)
    a.valu("v_max_f32", V(A_T1), S(SA_THR), V(A_T0))
    a.valu("v_max_f32", V(A_T2), 0, V(A_T0))
    a.scmp("s_cmp_eq_u32", S(SA_C), 0)
    a.salu("s_cselect_b64", "vcc", -1, 0)
    a.valu("v_cndmask_b32", V(A_T0), V(A_T2), V(A_T0), "vcc")
    a.valu("v_sub_f32", V(A_T1), 0, V(A_T0))
    a.valu("v_exp_f32", V(A_T1), V(A_T1))
    a.valu("v_cndmask_b32", V(A_T1), V(A_T1), 0, "vcc", mods="")
    a.valu("v_add_f32", V(A_M), V(A_M), V(A_T0))
    a.valu("v_mul_f32", V(A_L0), V(A_L0), V(A_T1))
    a.valu("v_mul_f32", V(A_L1), V(A_L1), V(A_T1))
    for i in range(64):
        a.valu("v_sub_f32", V(S0 + i), V(S0 + i), V(A_T0))
    for i in range(64):
        a.valu("v_mul_f32", V(A_O + i), V(A_O + i), V(A_T1))
    a.valu("v_sub_f32", V(A_NM), 0, V(A_M))
    for i in range(1, 16):
        a.valu("v_mov_b32", V(A_NM + i), V(A_NM))
    a.salu("s_mov_b32", S(SA_THR), f32bits(THRESH))
    a.label(lfast)
    mid()
    for i in range(0, 64, 2):
        a.valu("v_exp_f32", V(S0 + i), V(S0 + i))
        a.valu("v_exp_f32", V(S0 + i + 1), V(S0 + i + 1))
        if i >= 2:
            k = i - 2
            a.valu("v_add_f32", V(A_L0), V(A_L0), V(S0 + k))
            a.valu("v_add_f32", V(A_L1), V(A_L1), V(S0 + k + 1))
            a.valu("v_cvt_pk_bf16_f32", V(S0 + k // 2), V(S0 + k), V(S0 + k + 1))
    a.valu("v_add_f32", V(A_L0), V(A_L0), V(S0 + 62))
    a.valu("v_add_f32", V(A_L1), V(A_L1), V(S0 + 63))
    a.valu("v_cvt_pk_bf16_f32", V(S0 + 31), V(S0 + 62), V(S0 + 63))
    if "ast" in EXP:
        stamp(a, 7)


def a_unit_init(a):
    a.valu("v_mov_b32", V(A_M), 0)
    for i in range(16):
        a.valu("v_mov_b32", V(A_NM + i), 0)
    a.salu("s_mov_b32", S(SA_THR), 0xFF800000)


def gen_A(a):
    tail = []
    diag_init(a)
    a.valu("v_lshrrev_b32", "v1", 4, "v0")
    a.valu("v_and_b32", V(A_T0), 15, "v0")
    a.valu("v_lshrrev_b32", V(A_T2), 5, "v0")
    a.valu("v_xor_b32", V(A_T3), V(A_T2), V(A_T0))
    a.valu("v_and_b32", V(A_KB), 31, "v0")
    a.valu("v_lshlrev_b32", V(A_KB), 8, V(A_KB))
    a.valu("v_lshl_add_u32", V(A_KB), V(A_T3), 4, V(A_KB))
    a.valu("v_bfe_u32", V(A_T3), "v0", 2, 2)
    a.valu("v_lshl_add_u32", V(A_VB), V(A_T2), 2, V(A_T3))
    a.valu("v_lshlrev_b32", V(A_VB), 8, V(A_VB))
    a.valu("v_lshl_add_u32", V(A_VB), V(A_T3), 6, V(A_VB))
    a.valu("v_and_b32", V(A_T3), 1, "v1")
    a.valu("v_lshl_add_u32", V(A_VB), V(A_T3), 5, V(A_VB))
    a.valu("v_and_b32", V(A_AD), 3, "v0")
    a.valu("v_lshl_add_u32", V(A_VB), V(A_AD), 3, V(A_VB))
    a.salu("s_and_b32", "s60", "s3", 1)
    a.salu("s_lshl_b32", "s59", "s60", 13)
    a.valu("v_lshl_add_u32", V(A_QA), "v0", 4, "s59")
    a.salu("s_lshr_b32", "s59", "s3", 1)
    a.salu("s_lshl_b32", "s59", "s59", 14)
    a.salu("s_lshl_b32", "s60", "s60", 10)
    a.salu("s_add_u32", "s59", "s59", "s60")
    a.salu("s_add_u32", "s59", "s59", OBUF)
    a.valu("v_lshl_add_u32", V(A_VO), "v0", 4, "s59")
    a.valu("v_mov_b32", V(A_FLG), FLG)
    for i in range(64):
        a.valu("v_mov_b32", V(A_O + i), 0)
    a.valu("v_mov_b32", V(A_L0), 0)
    a.valu("v_mov_b32", V(A_L1), 0)
    a.valu("v_mov_b32", V(A_ONE), 0)
    a.valu("v_mov_b32", V(A_CNT), 0)
    a.salu("s_lshl_b32", "s59", "s3", 2)
    a.salu("s_add_u32", "s59", "s59", FLG + F_CD)
    a.valu("v_mov_b32", V(A_FW), "s59")
    a.salu("s_mov_b32", S(SA_RS), 0)
    a.salu("s_mov_b32", S(SA_U), 0)
    a.salu("s_mov_b32", S(SA_OO), 0)
    a.ds_read("ds_read_b128", A_CL, 4, A_FLG, off=F_CL)
    a.salu("s_mov_b32", S(SA_NL), 1)
    a.misc("s_setprio 2")
    stamp(a, 4)

    a.label("La_unit")
    a_qstep(a, tail)
    a.salu("s_mov_b32", S(SA_C), 0)
    a.label("La_chunk")
    for pos in range(4):
        a.comment("---- A step pos %d ----" % pos)
        a_step(a, pos, tail)
    a.salu("s_add_u32", S(SA_C), S(SA_C), 1)
    a.scmp("s_cmp_lt_u32", S(SA_C), 4)
    a.branch("s_cbranch_scc1", "La_chunk")
    a.waitcnt(lgkm=0)
    a.ds_read("ds_read_b128", A_AD, 4, A_FLG, off=F_OF)
    a.valu("v_add_f32", V(A_T0), V(A_L0), V(A_L1))
    a.valu("v_mov_b32", V(A_T1), V(A_T0))
    a.permlane32_swap(A_T0, A_T1)
    a.valu("v_add_f32", V(A_T0), V(A_T0), V(A_T1))
    a.valu("v_rcp_f32", V(A_T0), V(A_T0))
    for dt in range(4):
        for kk in range(2):
            b = A_O + 16 * dt + 8 * kk
            d = A_S + 8 * dt + 4 * kk
            for i in range(8):
                a.valu("v_mul_f32", V(b + i), V(b + i), V(A_T0))
            for i in range(0, 8, 2):
                a.valu("v_cvt_pk_bf16_f32", V(d + i // 2), V(b + i), V(b + i + 1))
    stamp(a, 3)
    a.waitcnt(lgkm=0)
    lds_check(a, A_FLG, F_OF, A_AD, SA_T, SA_U, SA_SP, tail)
    stamp(a, 1)
    for f in range(8):
        a.ds_write("ds_write_b128", A_VO, A_S + 4 * f, 4, off=f * 2048)
    a.waitcnt(lgkm=0)
    a.valu("v_add_u32", V(A_T2), F_OW - F_CD, V(A_FW))
    lds_post(a, A_T2, A_ONE)
    a.salu("s_add_u32", S(SA_U), S(SA_U), 1)
    a.scmp("s_cmp_lt_u32", S(SA_U), 4)
    a.branch("s_cbranch_scc1", "La_unit")
    a.waitcnt(lgkm=0)
    stamp(a, 5)
    diag_dump(a, A_T2)
    a.branch("s_branch", "Lm_done")
    for t in tail:
        t(a)


P_FW = 0
P_L16 = 1
P_VDK = 2
P_VDV = 6
P_VDQ = 7
P_ACC = 8
P_OF = 152
P_WF = 168
P_NW = 19
P_FLG = 244
P_CNT = 245
P_OCNT = 246
P_OA = 247
P_F = 248
P_T0 = 248
P_T1 = 249
P_T2 = 250
P_T3 = 251
SP_K = 8
SP_V = 12
SP_Q = 16
SP_X = 20
SP_WO = 28
SP_OUT = 32
SP_YU = 26
SP_W = 27
SP_A = 62
SP_B = 63
SP_T = 64
SP_T2 = 65
SP_PEND = 66
SP_SPIN = 67
SP_I = 68
SP_TN = 69
SP_SH = 70
SP_KN = 71
SP_VN = 72
SP_QN = 73
SP_WS = 74
SP_WLIM = 75
SP_PI = 76
SP_YT = 77
SP_CD = 78
INFL = int(os.environ.get("INFL", "3"))
PHI = int(os.environ.get("PHI", "4"))


def p_issue_tile(a):
    lk, lv, ld = uid("Ltk"), uid("Ltv"), uid("Ltd")
    a.salu("s_mov_b32", "m0", S(SP_WS))
    a.scmp("s_cmp_ge_u32", S(SP_PI), 2)
    a.branch("s_cbranch_scc1", lk)
    for i in range(4):
        a.dma(P_VDQ, SP_Q, S(SP_QN), off=1024 * i)
    a.salu("s_add_u32", S(SP_QN), S(SP_QN), SLOT)
    a.branch("s_branch", ld)
    a.label(lk)
    a.op("s_bitcmp1_b32 %s, 1" % S(SP_PI), "salu", [], [S(SP_PI)])
    a.branch("s_cbranch_scc0", lv)
    for i in range(4):
        a.dma(P_VDK + i, SP_K, S(SP_KN), off=1024 * i, flags=KVF)
    a.salu("s_add_u32", S(SP_KN), S(SP_KN), SLOT)
    a.branch("s_branch", ld)
    a.label(lv)
    for i in range(4):
        a.dma(P_VDV, SP_V, S(SP_VN), off=1024 * i, flags=KVF)
    a.salu("s_add_u32", S(SP_VN), S(SP_VN), SLOT)
    a.label(ld)
    a.salu("s_add_u32", S(SP_WS), S(SP_WS), SLOT)
    a.scmp("s_cmp_ge_u32", S(SP_WS), S(SP_WLIM))
    a.salu("s_cselect_b32", S(SP_T), NSLOT * SLOT, 0)
    a.salu("s_sub_u32", S(SP_WS), S(SP_WS), S(SP_T))
    a.salu("s_add_u32", S(SP_PI), S(SP_PI), 1)
    a.scmp("s_cmp_eq_u32", S(SP_PI), 18)
    a.salu("s_cselect_b32", S(SP_PI), 0, S(SP_PI))
    a.salu("s_add_u32", S(SP_TN), S(SP_TN), 1)


def p_retire_one(a):
    ld = uid("Lrd")
    labs = [uid("Lr") for _ in range(INFL)]
    for k in range(INFL, 1, -1):
        a.scmp("s_cmp_lg_u32", S(SP_PEND), k)
        a.branch("s_cbranch_scc1", labs[k - 1])
        a.waitcnt(vm=4 * (k - 1))
        a.branch("s_branch", ld)
        a.label(labs[k - 1])
    a.waitcnt(vm=0)
    a.label(ld)
    lds_post(a, P_FW, P_CNT)
    a.salu("s_sub_u32", S(SP_PEND), S(SP_PEND), 1)


def gen_y(a):
    vq = Queue(a, "vm")
    lq = Queue(a, "lgkm")
    a.salu("s_mul_i32", S(SP_A), S(SP_YU), 81920)

    def wload(i):
        a.buf_load(P_WF + 4 * (i % P_NW), 4, P_L16, SP_WO, S(SP_A), off=(i & 3) * 1024, flags=WOF)
        vq.push(("w", i))
        if (i & 3) == 3:
            a.salu("s_add_u32", S(SP_A), S(SP_A), 4096)

    def oread(ks):
        for qh in range(2):
            a.ds_read("ds_read_b128", P_OF + 8 * (ks & 1) + 4 * qh, 4, P_OA, off=ks * 2048 + qh * 1024)
            lq.push(("o", ks, qh))

    for i in range(P_NW):
        wload(i)
    oread(0)
    for ks in range(16):
        if ks < 15:
            oread(ks + 1)
        lq.wait(("o", ks, 1))
        if ks == 15:
            a.valu("v_add_u32", V(P_T0), F_OF - F_CL, V(P_FW))
            lds_post(a, P_T0, P_OCNT)
        o0 = P_OF + 8 * (ks & 1)
        o1 = o0 + 4
        for ct in range(5):
            i = 5 * ks + ct
            vq.wait(("w", i))
            w = P_WF + 4 * (i % P_NW)
            if ct < 4:
                a.mfma32(P_ACC + 32 * ct, w, o0)
                a.mfma32(P_ACC + 32 * ct + 16, w, o1)
            else:
                l1, l2 = uid("Lsh"), uid("Lsh")
                a.scmp("s_cmp_lg_u32", S(SP_SH), 0)
                a.lines.append("    s_cbranch_scc1 %s" % l1)
                a.mfma32(P_ACC + 128, w, o0)
                a.lines.append("    s_branch %s" % l2)
                a.lines.append(l1 + ":")
                a.mfma32(P_ACC + 128, w, o1)
                a.lines.append(l2 + ":")
            if i + P_NW < 80:
                wload(i + P_NW)


def gen_P(a):
    a.label("Lp_start")
    diag_init(a)
    a.misc("s_setprio 3")
    a.salu("s_sub_u32", S(SP_W), "s3", 4)
    a.valu("v_lshlrev_b32", V(P_L16), 4, "v0")
    a.salu("s_lshl_b32", "s59", "s6", 4)
    a.salu("s_lshl_b32", "s60", "s5", 2)
    a.salu("s_add_u32", "s59", "s59", "s60")
    a.salu("s_lshl_b32", "s59", "s59", 17)
    a.salu("s_add_u32", "s38", "s38", "s59")
    a.salu("s_addc_u32", "s39", "s39", 0)
    a.salu("s_add_u32", "s40", "s40", "s59")
    a.salu("s_addc_u32", "s41", "s41", 0)
    a.srd(SP_K, 38, 39, 4 * 131072)
    a.srd(SP_V, 40, 41, 4 * 131072)
    a.valu("v_lshrrev_b32", V(P_T2), 4, "v0")
    a.valu("v_and_b32", V(P_T0), 15, "v0")
    a.salu("s_lshl_b32", "s59", S(SP_W), 12)
    a.valu("v_lshl_add_u32", V(P_T1), V(P_T2), 8, "s59")
    for i in range(4):
        a.valu("v_add_u32", V(P_T3), 4 * i, V(P_T2))
        a.valu("v_xor_b32", V(P_T3), V(P_T3), V(P_T0))
        a.valu("v_lshl_add_u32", V(P_VDK + i), V(P_T3), 4, V(P_T1))
    a.valu("v_lshlrev_b32", V(P_T3), 2, V(P_T2))
    a.valu("v_xor_b32", V(P_T3), V(P_T3), V(P_T0))
    a.valu("v_lshl_add_u32", V(P_VDV), V(P_T3), 4, V(P_T1))
    a.valu("v_add_u32", V(P_VDQ), "s59", V(P_L16))
    a.valu("v_mov_b32", V(P_FLG), FLG)
    a.valu("v_mov_b32", V(P_CNT), 0)
    a.valu("v_mov_b32", V(P_OCNT), 0)
    a.valu("v_add_u32", V(P_OA), OBUF, V(P_L16))
    a.salu("s_lshl_b32", "s60", S(SP_W), 2)
    a.salu("s_add_u32", "s60", "s60", FLG + F_CL)
    a.valu("v_mov_b32", V(P_FW), "s60")
    for r in (SP_KN, SP_VN, SP_QN, SP_PI, SP_TN, SP_YU, SP_PEND, SP_SPIN):
        a.salu("s_mov_b32", S(r), 0)
    a.salu("s_mov_b32", S(SP_WS), "s59")
    a.salu("s_add_u32", S(SP_WLIM), S(SP_WS), NSLOT * SLOT)
    for t in range(INFL):
        p_issue_tile(a)
    a.salu("s_mov_b32", S(SP_PEND), INFL)
    a.salu("s_lshl_b32", "s59", "s4", 2)
    a.salu("s_add_u32", "s59", "s59", S(SP_W))
    a.salu("s_lshl_b32", "s59", "s59", 4)
    a.salu("s_lshl_b32", "s60", "s5", 2)
    a.salu("s_add_u32", "s59", "s59", "s60")
    a.salu("s_mul_i32", "s59", "s59", 81920)
    a.salu("s_add_u32", "s59", "s59", WOP_OFF)
    a.salu("s_add_u32", "s60", "s56", "s59")
    a.salu("s_addc_u32", "s61", "s57", 0)
    a.srd(SP_WO, 60, 61, 4 * 81920)
    a.salu("s_mul_i32", "s59", "s7", 16 * 18432)
    a.salu("s_add_u32", "s59", "s59", O_OFF)
    a.salu("s_add_u32", "s60", "s56", "s59")
    a.salu("s_addc_u32", "s61", "s57", 0)
    a.srd(SP_X, 60, 61, 16 * 18432)
    a.srd(SP_OUT, 52, 53, 32 * 64 * 2304)
    a.salu("s_and_b32", S(SP_SH), S(SP_W), 1)
    a.salu("s_and_b32", S(SP_YT), "s6", 3)
    a.salu("s_mul_i32", S(SP_YT), S(SP_YT), PHI)
    a.salu("s_add_u32", S(SP_YT), S(SP_YT), 18)
    for i in range(144):
        a.valu("v_mov_b32", V(P_ACC + i), 0)

    a.label("Lp_loop")
    stamp(a, 5)
    a.scmp("s_cmp_lt_u32", S(SP_PEND), INFL)
    a.branch("s_cbranch_scc1", "Lp_chk")
    p_retire_one(a)
    stamp(a, 1)
    a.label("Lp_chk")
    a.ds_read("ds_read_b128", P_F, 4, P_FLG, off=F_CD)
    a.ds_read("ds_read_b128", P_F + 4, 4, P_FLG, off=F_OW)
    a.waitcnt(lgkm=0)
    lds_min4(a, P_F, SP_CD)
    lds_min4(a, P_F + 4, SP_T2)
    a.scmp("s_cmp_le_u32", S(SP_T2), S(SP_YU))
    a.branch("s_cbranch_scc1", "Lp_tile")
    a.salu("s_min_u32", S(SP_T), S(SP_YT), NTILE)
    a.scmp("s_cmp_ge_u32", S(SP_CD), S(SP_T))
    a.branch("s_cbranch_scc1", "Lp_y")
    a.label("Lp_tile")
    a.scmp("s_cmp_ge_u32", S(SP_TN), NTILE)
    a.branch("s_cbranch_scc1", "Lp_nospace")
    a.salu("s_add_u32", S(SP_T), S(SP_CD), NSLOT)
    a.scmp("s_cmp_ge_u32", S(SP_TN), S(SP_T))
    a.branch("s_cbranch_scc1", "Lp_nospace")
    p_issue_tile(a)
    a.salu("s_add_u32", S(SP_PEND), S(SP_PEND), 1)
    stamp(a, 0)
    a.branch("s_branch", "Lp_loop")
    a.label("Lp_nospace")
    a.scmp("s_cmp_eq_u32", S(SP_PEND), 0)
    a.branch("s_cbranch_scc1", "Lp_nap")
    p_retire_one(a)
    stamp(a, 1)
    a.branch("s_branch", "Lp_loop")
    a.label("Lp_nap")
    a.salu("s_add_u32", S(SP_SPIN), S(SP_SPIN), 1)
    a.scmp("s_cmp_ge_u32", S(SP_SPIN), 4 * SPIN_CAP)
    a.branch("s_cbranch_scc1", "Lp_fin")
    a.misc("s_sleep 1")
    stamp(a, 2)
    a.branch("s_branch", "Lp_loop")

    a.label("Lp_y")
    a.scmp("s_cmp_eq_u32", S(SP_PEND), 0)
    a.branch("s_cbranch_scc1", "Lp_y2")
    p_retire_one(a)
    a.branch("s_branch", "Lp_y")
    a.label("Lp_y2")
    stamp(a, 1)
    gen_y(a)
    stamp(a, 4)
    a.salu("s_add_u32", S(SP_YU), S(SP_YU), 1)
    a.salu("s_add_u32", S(SP_YT), S(SP_YT), 18)
    a.scmp("s_cmp_lt_u32", S(SP_YU), 4)
    a.branch("s_cbranch_scc1", "Lp_loop")
    a.label("Lp_fin")

    a.scmp("s_cmp_eq_u32", S(SP_W), "s5")
    a.branch("s_cbranch_scc1", "Lp_own")
    a.salu("s_lshl_b32", S(SP_T), S(SP_W), 2)
    a.salu("s_add_u32", S(SP_T), S(SP_T), "s5")
    a.salu("s_mul_i32", S(SP_A), S(SP_T), 18432)
    for x in range(18):
        r = P_ACC + 8 * x
        for i in range(4):
            a.valu("v_cvt_pk_bf16_f32", V(r + i), V(r + 2 * i), V(r + 2 * i + 1))
        a.buf_store(r, 4, P_L16, SP_X, S(SP_A), off=(x & 3) * 1024, flags="sc1")
        if (x & 3) == 3:
            a.salu("s_add_u32", S(SP_A), S(SP_A), 4096)
    a.waitcnt(vm=0)
    a.branch("s_branch", "Lp_sent")
    a.label("Lp_own")
    for x in range(36):
        a.ds_write("ds_write_b128", P_L16, P_ACC + 4 * x, 4, off=x * 1024)
    a.waitcnt(lgkm=0)
    a.label("Lp_sent")
    a.valu("v_mov_b32", V(P_T1), 1)
    a.salu("s_mov_b64", "exec", 1)
    a.op("ds_add_rtn_u32 %s, %s, %s offset:%d" % (V(P_T0), V(P_FLG), V(P_T1), F_XC), "ds", [V(P_T0)], [V(P_FLG), V(P_T1)])
    a.salu("s_mov_b64", "exec", -1)
    a.waitcnt(lgkm=0)
    a.readfirstlane(SP_T, P_T0)
    a.valu("v_mov_b32", V(P_T2), 0)
    a.salu("s_mov_b32", S(SP_PEND), S(SP_T))
    a.scmp("s_cmp_lg_u32", S(SP_T), 3)
    a.branch("s_cbranch_scc1", "Lp_xpoll")
    a.salu("s_mov_b64", "exec", 1)
    a.op("global_atomic_add %s, %s, s[24:25]" % (V(P_T2), V(P_T1)), "vmem", [], [V(P_T2), V(P_T1), "s24", "s25"])
    a.salu("s_mov_b64", "exec", -1)
    a.label("Lp_xpoll")
    stamp(a, 6)
    a.valu("v_bfe_u32", V(P_T3), V(P_L16), 4, 5)
    a.valu("v_mul_u32_u24", V(P_T3), 2304, V(P_T3))
    a.valu("v_lshrrev_b32", V(P_T1), 9, V(P_L16))
    a.valu("v_lshl_add_u32", V(P_T3), V(P_T1), 4, V(P_T3))
    a.salu("s_mul_i32", S(SP_KN), "s6", 147456)
    a.salu("s_mul_i32", S(SP_B), "s4", 1152)
    a.salu("s_add_u32", S(SP_KN), S(SP_KN), S(SP_B))
    a.salu("s_add_u32", S(SP_T), "s5", 1)
    a.salu("s_lshr_b32", S(SP_T), S(SP_T), 1)
    a.salu("s_lshl_b32", S(SP_T2), "s5", 2)
    a.salu("s_add_u32", S(SP_T), S(SP_T), S(SP_T2))
    a.salu("s_lshl_b32", S(SP_VN), S(SP_T), 6)
    a.salu("s_lshr_b32", S(SP_T), "s5", 1)
    a.salu("s_mul_i32", S(SP_T), S(SP_T), 9 * 64)
    a.salu("s_add_u32", S(SP_T), S(SP_T), 256)
    a.salu("s_and_b32", S(SP_T2), "s5", 1)
    a.salu("s_mul_i32", S(SP_T2), S(SP_T2), 32 * 2304)
    a.salu("s_add_u32", S(SP_QN), S(SP_T), S(SP_T2))
    a.salu("s_mov_b32", S(SP_SPIN), 0)
    a.scmp("s_cmp_lg_u32", S(SP_PEND), 3)
    a.branch("s_cbranch_scc1", "Lp_xl")
    a.label("Lp_xp")
    a.op("global_load_dword %s, %s, s[24:25] sc1" % (V(P_T0), V(P_T2)), "vmem", [V(P_T0)], [V(P_T2), "s24", "s25"])
    a.waitcnt(vm=0)
    a.readfirstlane(SP_T, P_T0)
    a.scmp("s_cmp_ge_u32", S(SP_T), 4)
    a.branch("s_cbranch_scc1", "Lp_xok")
    a.misc("s_sleep 4")
    a.salu("s_add_u32", S(SP_SPIN), S(SP_SPIN), 1)
    a.scmp("s_cmp_lt_u32", S(SP_SPIN), SPIN_CAP)
    a.branch("s_cbranch_scc1", "Lp_xp")
    a.label("Lp_xok")
    a.valu("v_mov_b32", V(P_T0), 1)
    a.salu("s_mov_b64", "exec", 1)
    a.ds_write("ds_write_b32", P_FLG, P_T0, 1, off=F_XC + 4)
    a.salu("s_mov_b64", "exec", -1)
    a.branch("s_branch", "Lp_xgo")
    a.label("Lp_xl")
    a.misc("s_sleep 1")
    a.ds_read("ds_read_b32", P_T0, 1, P_FLG, off=F_XC + 4)
    a.waitcnt(lgkm=0)
    a.readfirstlane(SP_T, P_T0)
    a.scmp("s_cmp_lg_u32", S(SP_T), 0)
    a.branch("s_cbranch_scc1", "Lp_xgo")
    a.salu("s_add_u32", S(SP_SPIN), S(SP_SPIN), 1)
    a.scmp("s_cmp_lt_u32", S(SP_SPIN), 8 * SPIN_CAP)
    a.branch("s_cbranch_scc1", "Lp_xl")
    a.label("Lp_xgo")
    stamp(a, 7)
    a.salu("s_mul_i32", S(SP_A), "s5", 4 * 18432)
    a.salu("s_lshl_b32", S(SP_T), S(SP_W), 10)
    a.salu("s_add_u32", S(SP_A), S(SP_A), S(SP_T))
    for src in range(4):
        a.scmp("s_cmp_eq_u32", "s5", src)
        a.salu("s_cselect_b32", S(SP_B), 0x10000000, S(SP_A))
        for k in range(5):
            a.buf_load(P_ACC + 20 * src + 4 * k, 4, P_L16, SP_X, S(SP_B), flags="sc1")
            a.salu("s_add_u32", S(SP_B), S(SP_B), 4096)
        a.salu("s_add_u32", S(SP_A), S(SP_A), 18432)
    a.salu("s_lshl_b32", S(SP_T), S(SP_W), 11)
    a.valu("v_add_u32", V(P_T0), S(SP_T), V(P_L16))
    OWN = P_ACC + 80
    for k in range(5):
        for hq in range(2):
            a.ds_read("ds_read_b128", OWN + 8 * k + 4 * hq, 4, P_T0, off=k * 8192 + hq * 1024)
    a.waitcnt(vm=0, lgkm=0)
    for k in range(5):
        for src in range(4):
            for i in range(4):
                pk = P_ACC + 20 * src + 4 * k + i
                a.valu("v_lshlrev_b32", V(P_T0), 16, V(pk))
                a.valu("v_and_b32", V(P_T1), 0xFFFF0000, V(pk))
                a.valu("v_add_f32", V(OWN + 8 * k + 2 * i), V(OWN + 8 * k + 2 * i), V(P_T0))
                a.valu("v_add_f32", V(OWN + 8 * k + 2 * i + 1), V(OWN + 8 * k + 2 * i + 1), V(P_T1))
        r = OWN + 8 * k
        for i in range(4):
            a.valu("v_cvt_pk_bf16_f32", V(r + i), V(r + 2 * i), V(r + 2 * i + 1))
        a.salu("s_add_u32", S(SP_T), S(SP_W), 4 * k)
        a.salu("s_lshr_b32", S(SP_T2), S(SP_T), 2)
        a.salu("s_lshl_b32", S(SP_T2), S(SP_T2), 6)
        a.salu("s_add_u32", S(SP_T2), S(SP_T2), S(SP_VN))
        a.salu("s_bfe_u32", S(SP_I), S(SP_T), 0x10001)
        a.salu("s_mul_i32", S(SP_I), S(SP_I), 32 * 2304)
        a.salu("s_add_u32", S(SP_T2), S(SP_T2), S(SP_I))
        a.scmp("s_cmp_ge_u32", S(SP_T), 16)
        a.salu("s_cselect_b32", S(SP_T2), S(SP_QN), S(SP_T2))
        a.salu("s_and_b32", S(SP_I), S(SP_T), 1)
        a.salu("s_lshl_b32", S(SP_I), S(SP_I), 5)
        a.salu("s_add_u32", S(SP_T2), S(SP_T2), S(SP_I))
        a.salu("s_add_u32", S(SP_T2), S(SP_T2), S(SP_KN))
        a.scmp("s_cmp_ge_u32", S(SP_T), 18)
        a.salu("s_cselect_b32", S(SP_T2), 0x10000000, S(SP_T2))
        a.buf_store(r, 4, P_T3, SP_OUT, S(SP_T2))
    if DIAG:
        a.waitcnt(vm=0)
        stamp(a, 3)
        diag_dump(a, P_T0)
    a.branch("s_branch", "Lm_done")


def main():
    out = sys.argv[1] if len(sys.argv) > 1 else "cdna_kernels/%s.s" % NAME
    a = Asm()
    a.raw(HEADER)
    gen_qproj_kernel(a)
    a.hist = []
    gen_main(a)
    a.raw('.section .rodata,"a"\n.p2align 6')
    a.raw(kd("qproj_kernel", 256, 80, 256))
    a.raw(".p2align 6")
    a.raw(kd(NAME + "_kernel", 256, 100 if DIAG else 80, 256))
    open(out, "w").write(a.text())
    print("wrote %s: %d instructions, %d nop states" % (out, a.n_ins, a.nops_inserted))


if __name__ == "__main__":
    main()
```

```python
import math
import struct
import sys
import os

sys.path.insert(0, os.path.dirname(os.path.abspath(__file__)))
from asmlib import Asm, V, S, vr, sr

NAME = "concat_heads__gqa_block_cached__gqa_block_cached__near_ridge"

WOP_OFF = 0
WOP_SZ = 2 * 4 * 16 * 16 * 5 * 1024
Q_OFF = WOP_OFF + WOP_SZ
Q_SZ = 256 * 4 * 32768
O_OFF = Q_OFF + Q_SZ
O_SZ = 64 * 16 * 18432
CNT_OFF = O_OFF + O_SZ
WS_USED = CNT_OFF + 64 * 128

SLOT = 16384
NSLOT = int(os.environ.get("NSLOT", "7"))
OBUF = NSLOT * SLOT
FLG = OBUF + 32768
LDS_MAIN = FLG + 128
F_CD, F_CL, F_OW, F_OF, F_XC = 0, 16, 32, 48, 64
LDS_Q = 3 * 49152

SCALE = (128 ** -0.5) * math.log2(math.e)
THRESH = 8.0
SPIN_CAP = 300000

DIAG = bool(int(os.environ.get("DIAG", "0")))
EXP = os.environ.get("EXP", "")
DIAG_OFF = 128 << 20


def f32bits(x):
    return struct.unpack("<I", struct.pack("<f", x))[0]


def stamp(a, acc=None):
    if not DIAG:
        return
    a.op("s_memtime s[80:81]", "smem", ["s80", "s81"], [])
    a.waitcnt(lgkm=0)
    if acc is not None:
        a.salu("s_sub_u32", "s83", "s80", "s82")
        a.salu("s_add_u32", S(84 + acc), S(84 + acc), "s83")
    a.salu("s_mov_b32", "s82", "s80")


def diag_init(a):
    if not DIAG:
        return
    for i in range(8):
        a.salu("s_mov_b32", S(84 + i), 0)
    stamp(a)
    a.salu("s_mov_b32", "s92", "s80")


def diag_dump(a, tmpv, wslo=56, extra=0):
    if not DIAG:
        return
    stamp(a)
    a.salu("s_sub_u32", "s93", "s80", "s92")
    a.salu("s_lshl_b32", "s83", "s2", 3)
    a.salu("s_add_u32", "s83", "s83", "s3")
    a.salu("s_lshl_b32", "s83", "s83", 6)
    a.salu("s_add_u32", "s83", "s83", DIAG_OFF + extra)
    a.salu("s_add_u32", "s94", S(wslo), "s83")
    a.salu("s_addc_u32", "s95", S(wslo + 1), 0)
    a.valu("v_mov_b32", V(tmpv), 0)
    a.salu("s_mov_b64", "exec", 1)
    for i in range(10):
        a.valu("v_mov_b32", V(tmpv + 1), S(84 + i))
        a.op("global_store_dword %s, %s, s[94:95] offset:%d" % (V(tmpv), V(tmpv + 1), 4 * i), "vmem", [],
             [V(tmpv), V(tmpv + 1), "s94", "s95"])
        a.waitcnt(vm=0)
    a.salu("s_mov_b64", "exec", -1)


HEADER = """; Kernarg layout for this problem (104 bytes, ptrs only, base s[0:1]):
;   offset   0: d_in[0] A_x  shape=(32, 64, 576) dtype=bfloat16
;   offset   8: d_in[1] A_k_cache  shape=(32, 16, 512, 128) dtype=bfloat16
;   offset  16: d_in[2] A_v_cache  shape=(32, 16, 512, 128) dtype=bfloat16
;   offset  24: d_in[3] A_wq  shape=(576, 4096) dtype=bfloat16
;   offset  32: d_in[4] A_wo  shape=(4096, 576) dtype=bfloat16
;   offset  40: d_in[5] B_x  shape=(32, 64, 576) dtype=bfloat16
;   offset  48: d_in[6] B_k_cache  shape=(32, 16, 512, 128) dtype=bfloat16
;   offset  56: d_in[7] B_v_cache  shape=(32, 16, 512, 128) dtype=bfloat16
;   offset  64: d_in[8] B_wq  shape=(576, 4096) dtype=bfloat16
;   offset  72: d_in[9] B_wo  shape=(4096, 576) dtype=bfloat16
;   offset  80: d_out     shape=(32, 64, 1152) dtype=bfloat16 (2 bytes/elem)
;   offset  88: d_debug   256 bytes
;   offset  96: d_ws      292028416 bytes workspace
; Generated by gen/gen9.py (hand-written generator).
; @launch kernel=qproj_kernel grid=(256,1,1) block=(512,1,1) lds=%d
; @launch kernel=%s_kernel grid=(256,1,1) block=(512,1,1) lds=%d
.amdgcn_target "amdgcn-amd-amdhsa--gfx950"
.text
""" % (LDS_Q, NAME, LDS_MAIN)


def kd(name, vgpr, sgpr, accum):
    return """.amdhsa_kernel %s
  .amdhsa_next_free_vgpr %d
  .amdhsa_next_free_sgpr %d
  .amdhsa_accum_offset %d
  .amdhsa_group_segment_fixed_size 0
  .amdhsa_kernarg_size 104
  .amdhsa_user_sgpr_count 2
  .amdhsa_user_sgpr_kernarg_segment_ptr 1
  .amdhsa_system_sgpr_workgroup_id_x 1
.end_amdhsa_kernel
""" % (name, vgpr, sgpr, accum)


G_VX = 2
G_VW = 6
G_BC = 8
G_AC = 9
G_BA = 10
G_AA = 14
G_T0 = 16
G_T1 = 17
G_T2 = 18
G_T3 = 19
G_L16 = 20
G_CB = 23
G_WO = 24
G_AF = 48
G_BF = 64
G_ACC = 96
GLF = os.environ.get("GLF", "")
GBUF = 49152
WARM = bool(int(os.environ.get("WARM", "0")))


def gen_qproj_kernel(a):
    a.raw(".globl qproj_kernel\n.p2align 8\n.type qproj_kernel,@function\nqproj_kernel:")
    a.scmp("s_cmp_ge_u32", "s2", 256)
    a.branch("s_cbranch_scc1", "Lg_done")
    diag_init(a)
    a.s_load(36, 8, 0, 0)
    a.s_load(44, 2, 0, 32)
    a.s_load(48, 8, 0, 40)
    a.s_load(56, 2, 0, 72)
    a.s_load(58, 2, 0, 96)
    a.valu("v_lshrrev_b32", "v1", 6, "v0")
    a.readfirstlane(3, 1)
    a.valu("v_lshlrev_b32", V(G_T3), 4, "v0")
    a.valu("v_and_b32", "v0", 63, "v0")
    a.valu("v_lshlrev_b32", V(G_L16), 4, "v0")
    a.salu("s_bfe_u32", "s4", "s2", 0x10002)
    a.salu("s_and_b32", "s5", "s2", 3)
    a.salu("s_bfe_u32", "s6", "s2", 0x20003)
    a.salu("s_lshr_b32", "s7", "s2", 5)
    a.salu("s_lshl_b32", "s26", "s5", 2)
    a.salu("s_add_u32", "s26", "s26", "s6")
    a.valu("v_lshrrev_b32", V(G_T0), 3, "v0")
    a.salu("s_lshl_b32", "s27", "s3", 5)
    a.valu("v_add_u32", V(G_T0), "s27", V(G_T0))
    a.valu("v_mul_u32_u24", V(G_T0), 1152, V(G_T0))
    a.valu("v_and_b32", V(G_T1), 7, "v0")
    a.valu("v_lshrrev_b32", V(G_T2), 4, "v0")
    a.valu("v_xor_b32", V(G_T1), V(G_T1), V(G_T2))
    a.valu("v_lshl_add_u32", V(G_VX), V(G_T1), 4, V(G_T0))
    a.valu("v_add_u32", V(G_VX + 2), 2 * (8 * 1152 - 1024), V(G_VX))
    a.valu("v_xor_b32", V(G_T1), 4, V(G_T1))
    a.valu("v_lshl_add_u32", V(G_VX + 1), V(G_T1), 4, V(G_T0))
    a.valu("v_add_u32", V(G_VX + 1), 8 * 1152 - 1024, V(G_VX + 1))
    a.valu("v_add_u32", V(G_VX + 3), 2 * (8 * 1152 - 1024), V(G_VX + 1))
    a.salu("s_lshl_b32", "s27", "s3", 3)
    a.valu("v_add_u32", V(G_T0), "s27", V(G_T2))
    a.valu("v_lshlrev_b32", V(G_T0), 13, V(G_T0))
    a.valu("v_and_b32", V(G_T1), 15, "v0")
    a.valu("v_lshlrev_b32", V(G_T2), 2, V(G_T2))
    a.valu("v_xor_b32", V(G_T1), V(G_T1), V(G_T2))
    a.valu("v_lshl_add_u32", V(G_VW), V(G_T1), 4, V(G_T0))
    a.valu("v_add_u32", V(G_VW + 1), 4 * 8192 - 1024, V(G_VW))
    a.salu("s_mov_b32", "s28", 0)
    a.salu("s_lshl_b32", "s29", "s26", 9)
    a.salu("s_lshl_b32", "s30", "s3", 12)
    a.salu("s_lshl_b32", "s31", "s3", 11)
    a.salu("s_add_u32", "s31", "s31", 32768)
    a.salu("s_mov_b32", "s34", 0)
    a.salu("s_mov_b32", "s63", 0)
    a.waitcnt(lgkm=0)
    a.scmp("s_cmp_eq_u32", "s4", 1)
    for i in range(10):
        a.salu("s_cselect_b32", S(36 + i), S(48 + i), S(36 + i))
    a.salu("s_mul_i32", "s27", "s7", 256 * 1152)
    a.salu("s_add_u32", "s36", "s36", "s27")
    a.salu("s_addc_u32", "s37", "s37", 0)
    a.srd(8, 36, 37, 256 * 1152)
    a.srd(12, 42, 43, 576 * 8192)

    def dma_ops():
        ops = []

        def m0x():
            a.salu("s_add_u32", "s62", "s30", "s34")
            a.salu("s_mov_b32", "m0", "s62")
            a.dma(G_VX, 8, "s28", flags=GLF)
        ops.append(m0x)
        for ii in range(1, 4):
            ops.append(lambda ii=ii: a.dma(G_VX + ii, 8, "s28", off=1024 * ii, flags=GLF))

        def m0w():
            a.salu("s_add_u32", "s62", "s31", "s34")
            a.salu("s_mov_b32", "m0", "s62")
            a.dma(G_VW, 12, "s29", flags=GLF)
        ops.append(m0w)

        def last():
            a.dma(G_VW + 1, 12, "s29", off=1024, flags=GLF)
            a.salu("s_add_u32", "s28", "s28", 128)
            a.salu("s_add_u32", "s29", "s29", 64 * 8192)
            a.salu("s_add_u32", "s34", "s34", GBUF)
            a.scmp("s_cmp_eq_u32", "s34", 3 * GBUF)
            a.salu("s_cselect_b32", "s34", 0, "s34")
            a.salu("s_add_u32", "s63", "s63", 1)
            a.scmp("s_cmp_eq_u32", "s63", 9)
            a.salu("s_cselect_b32", "s28", 0, "s28")
            a.salu("s_cselect_b32", "s62", (576 * 8192 - 256) & 0xFFFFFFFF, 0)
            a.salu("s_sub_u32", "s29", "s29", "s62")
            a.scmp("s_cmp_ge_u32", "s63", 18)
            a.salu("s_cselect_b32", "s28", 0x10000000, "s28")
            a.salu("s_cselect_b32", "s29", 0x10000000, "s29")
            a.salu("s_cselect_b32", "s34", 0x28000, "s34")
        ops.append(last)
        return ops

    for _ in range(2):
        for f in dma_ops():
            f()
    if WARM:
        a.salu("s_mul_i32", "s60", "s7", 256 * 1152)
        a.salu("s_sub_u32", "s60", "s36", "s60")
        a.salu("s_subb_u32", "s61", "s37", 0)
        a.srd(16, 60, 61, 2048 * 1152)
        a.salu("s_mov_b32", "m0", 0x28000)
        a.salu("s_lshr_b32", "s33", "s2", 3)
        for i in range(5):
            a.salu("s_add_u32", "s60", "s3", 8 * i)
            a.salu("s_lshr_b32", "s61", "s60", 1)
            a.salu("s_mul_i32", "s62", "s33", 18)
            a.salu("s_add_u32", "s61", "s61", "s62")
            a.salu("s_lshl_b32", "s61", "s61", 13)
            a.salu("s_and_b32", "s62", "s60", 1)
            a.salu("s_lshl_b32", "s62", "s62", 10)
            a.salu("s_add_u32", "s61", "s61", "s62")
            a.salu("s_lshl_b32", "s62", "s5", 11)
            a.salu("s_add_u32", "s61", "s61", "s62")
            a.scmp("s_cmp_ge_u32", "s60", 36)
            a.salu("s_cselect_b32", "s61", 0x10000000, "s61")
            a.buf_load(192 + 4 * i, 4, G_L16, 12, "s61", flags=GLF)
        a.salu("s_mul_i32", "s60", "s33", 73728)
        a.salu("s_mul_i32", "s61", "s3", 9216)
        a.salu("s_add_u32", "s60", "s60", "s61")
        for i in range(9):
            a.buf_load(212 + 4 * i, 4, G_L16, 16, "s60", off=(i & 3) * 1024, flags=GLF)
            if (i & 3) == 3:
                a.salu("s_add_u32", "s60", "s60", 4096)
    a.salu("s_and_b32", "s32", "s2", 3)
    a.salu("s_lshl_b32", "s32", "s32", 5)
    a.salu("s_lshr_b32", "s33", "s2", 3)
    a.salu("s_add_u32", "s32", "s32", "s33")
    a.salu("s_mul_i32", "s33", "s32", 36864)
    a.salu("s_add_u32", "s44", "s44", "s33")
    a.salu("s_addc_u32", "s45", "s45", 0)
    a.srd(16, 44, 45, 36864)
    a.salu("s_mov_b32", "s33", 0)
    for i in range(5):
        a.buf_load(G_WO + 4 * i, 4, G_T3, 16, "s33", flags="nt")
        if i < 4:
            a.salu("s_add_u32", "s33", "s33", 8192)
    a.salu("s_and_b32", "s27", "s3", 1)
    a.salu("s_lshr_b32", "s35", "s3", 1)
    a.valu("v_and_b32", V(G_T0), 31, "v0")
    a.valu("v_bfe_u32", V(G_T1), "v0", 1, 3)
    a.valu("v_lshrrev_b32", V(G_T2), 5, "v0")
    a.valu("v_xor_b32", V(G_T1), V(G_T1), V(G_T2))
    a.valu("v_lshlrev_b32", V(G_T0), 7, V(G_T0))
    a.valu("v_lshl_add_u32", V(G_T0), V(G_T1), 4, V(G_T0))
    a.salu("s_lshl_b32", "s33", "s35", 13)
    a.valu("v_add_u32", V(G_BC), "s33", V(G_T0))
    a.valu("v_bfe_u32", V(G_CB), "v0", 4, 1)
    a.valu("v_lshlrev_b32", V(G_CB), 5, V(G_CB))
    a.valu("v_and_b32", V(G_T0), 1, "v0")
    a.valu("v_lshl_add_u32", V(G_CB), V(G_T0), 4, V(G_CB))
    a.valu("v_bfe_u32", V(G_T0), "v0", 1, 1)
    a.valu("v_lshl_add_u32", V(G_CB), V(G_T0), 3, V(G_CB))
    a.valu("v_bfe_u32", V(G_T1), "v0", 2, 2)
    a.salu("s_lshl_b32", "s33", "s27", 7)
    a.valu("v_add_u32", V(G_T0), "s33", V(G_CB))
    a.valu("v_lshlrev_b32", V(G_AC), 6, V(G_T1))
    a.valu("v_xor_b32", V(G_T0), V(G_T0), V(G_AC))
    a.valu("v_lshl_add_u32", V(G_AC), V(G_T2), 3, V(G_T1))
    a.valu("v_lshl_add_u32", V(G_AC), V(G_AC), 8, V(G_T0))
    a.valu("v_add_u32", V(G_AC), 32768, V(G_AC))
    a.salu("s_lshl_b32", "s64", "s4", 5)
    a.salu("s_lshl_b32", "s65", "s7", 2)
    a.salu("s_add_u32", "s64", "s64", "s65")
    a.salu("s_add_u32", "s64", "s64", "s35")
    a.salu("s_lshl_b32", "s64", "s64", 2)
    a.salu("s_add_u32", "s64", "s64", "s5")
    a.salu("s_lshl_b32", "s64", "s64", 17)
    a.salu("s_lshl_b32", "s65", "s6", 15)
    a.salu("s_add_u32", "s64", "s64", "s65")
    a.salu("s_lshl_b32", "s65", "s27", 12)
    a.salu("s_add_u32", "s64", "s64", "s65")
    a.salu("s_add_u32", "s60", "s58", Q_OFF)
    a.salu("s_addc_u32", "s61", "s59", 0)
    a.srd(20, 60, 61, Q_SZ)
    a.salu("s_mov_b32", "s66", f32bits(SCALE))
    a.salu("s_mov_b32", "s33", 0)
    a.salu("s_mov_b32", "s67", 0)
    for i in range(64):
        a.valu("v_mov_b32", V(G_ACC + i), 0)
    stamp(a, 0)
    a.waitcnt(vm=25 if WARM else 11)
    stamp(a, 1)

    a.label("Lg_loop")
    a.barrier()
    stamp(a, 2)
    a.valu("v_add_u32", V(G_BA), "s67", V(G_BC))
    a.valu("v_add_u32", V(G_AA), "s67", V(G_AC))
    a.valu("v_xor_b32", V(G_AA + 1), 64, V(G_AA))

    def rd(ks):
        b = ks & 1
        if ks:
            a.valu("v_xor_b32", V(G_BA + ks), ks << 5, V(G_BA))
        if "gnolds" in EXP:
            return
        for dtl in range(2):
            for t in range(2):
                a.ds_read("ds_read_b64_tr_b16", G_AF + 8 * b + 4 * dtl + 2 * t, 2, G_AA + dtl, off=(16 * ks + 4 * t) * 256)
        for qt in range(2):
            a.ds_read("ds_read_b128", G_BF + 8 * b + 4 * qt, 4, G_BA + ks, off=4096 * qt)

    ops = dma_ops()
    rd(0)
    for ks in range(4):
        if ks < 3:
            rd(ks + 1)
            a.waitcnt(lgkm=6)
        else:
            a.waitcnt(lgkm=0)
        b = ks & 1
        for dtl in range(2):
            for qt in range(2):
                if "gnomfma" not in EXP:
                    a.mfma32(G_ACC + 32 * dtl + 16 * qt, G_AF + 8 * b + 4 * dtl, G_BF + 8 * b + 4 * qt)
                if ops and qt == 1:
                    f = ops.pop(0)
                    if "gnodma" not in EXP:
                        f()
    assert not ops
    a.salu("s_add_u32", "s67", "s67", GBUF)
    a.scmp("s_cmp_eq_u32", "s67", 3 * GBUF)
    a.salu("s_cselect_b32", "s67", 0, "s67")
    a.salu("s_add_u32", "s33", "s33", 1)
    stamp(a, 3)
    a.waitcnt(vm=6)
    stamp(a, 4)
    a.scmp("s_cmp_eq_u32", "s33", 9)
    a.branch("s_cbranch_scc1", "Lg_epi")
    a.scmp("s_cmp_lt_u32", "s33", 18)
    a.branch("s_cbranch_scc1", "Lg_loop")

    a.barrier()
    for i in range(5):
        a.ds_write("ds_write_b128", G_T3, G_WO + 4 * i, 4, off=i * 8192)
    a.salu("s_add_u32", "s60", "s58", CNT_OFF)
    a.salu("s_addc_u32", "s61", "s59", 0)
    a.srd(16, 60, 61, 64 * 128)
    a.salu("s_lshl_b32", "s28", "s2", 7)
    a.scmp("s_cmp_lg_u32", "s3", 0)
    a.salu("s_cselect_b32", "s28", 0x10000000, "s28")
    a.valu("v_and_b32", V(G_T0), 31, "v0")
    a.valu("v_lshlrev_b32", V(G_T0), 2, V(G_T0))
    a.valu("v_mov_b32", V(G_T1), 0)
    a.buf_store(G_T1, 1, G_T0, 16, "s28")
    a.srd(12, 58, 59, WOP_SZ)
    a.valu("v_lshrrev_b32", V(G_T2), 5, "v0")
    a.valu("v_bfe_u32", V(G_T1), "v0", 2, 2)
    a.valu("v_lshl_add_u32", V(G_T0), V(G_T2), 2, V(G_T1))
    a.valu("v_mul_u32_u24", V(G_T0), 1152, V(G_T0))
    a.valu("v_add_u32", V(G_T0), V(G_T0), V(G_CB))
    a.salu("s_mul_i32", "s28", "s27", 16 * 1152)
    a.salu("s_add_u32", "s29", "s35", 1)
    a.salu("s_lshr_b32", "s29", "s29", 1)
    a.salu("s_lshl_b32", "s30", "s35", 2)
    a.salu("s_add_u32", "s29", "s29", "s30")
    a.salu("s_lshl_b32", "s29", "s29", 6)
    a.salu("s_add_u32", "s29", "s29", "s28")
    a.valu("v_add_u32", V(G_T1), "s29", V(G_T0))
    a.salu("s_lshr_b32", "s29", "s35", 1)
    a.salu("s_mul_i32", "s29", "s29", 9 * 64)
    a.salu("s_add_u32", "s29", "s29", 256)
    a.salu("s_add_u32", "s29", "s29", "s28")
    a.valu("v_add_u32", V(G_T2), "s29", V(G_T0))
    a.salu("s_lshl_b32", "s28", "s4", 2)
    a.salu("s_add_u32", "s28", "s28", "s35")
    a.salu("s_lshl_b32", "s28", "s28", 7)
    a.salu("s_add_u32", "s28", "s28", "s32")
    a.salu("s_mul_i32", "s28", "s28", 10240)
    a.salu("s_mul_i32", "s29", "s27", 5120)
    a.salu("s_add_u32", "s28", "s28", "s29")
    a.salu("s_add_u32", "s29", "s28", 4096)
    a.waitcnt(lgkm=0)
    a.barrier()
    for ct in range(5):
        for t in range(2):
            if ct < 4:
                a.ds_read("ds_read_b64_tr_b16", G_AF + 4 * ct + 2 * t, 2, G_T1, off=8 * t * 1152 + 64 * ct)
            else:
                a.ds_read("ds_read_b64_tr_b16", G_AF + 4 * ct + 2 * t, 2, G_T2, off=8 * t * 1152)
    for ct in range(5):
        a.waitcnt(lgkm=8 - 2 * ct)
        a.buf_store(G_AF + 4 * ct, 4, G_L16, 12, "s28" if ct < 4 else "s29", off=(ct & 3) * 1024)
    stamp(a, 6)

    a.label("Lg_epi")
    for qt in range(2):
        a.salu("s_add_u32", "s65", "s64", qt * 8192)
        for dtl in range(2):
            for hf in range(2):
                b = G_ACC + 32 * dtl + 16 * qt + 8 * hf
                d = G_ACC + 64 + 4 * (4 * qt + 2 * dtl + hf)
                for i in range(8):
                    a.valu("v_mul_f32", V(b + i), "s66", V(b + i))
                for i in range(0, 8, 2):
                    a.valu("v_cvt_pk_bf16_f32", V(d + i // 2), V(b + i), V(b + i + 1))
                a.buf_store(d, 4, G_L16, 20, "s65", off=dtl * 2048 + hf * 1024)
    a.salu("s_add_u32", "s64", "s64", 16384)
    for i in range(64):
        a.valu("v_mov_b32", V(G_ACC + i), 0)
    stamp(a, 5)
    a.scmp("s_cmp_eq_u32", "s33", 9)
    a.branch("s_cbranch_scc1", "Lg_loop")
    if DIAG:
        a.waitcnt(vm=0)
        stamp(a, 7)
        diag_dump(a, G_T0, 58, 1 << 20)
    a.label("Lg_done")
    a.raw("    s_endpgm")


class Queue:
    def __init__(self, a, kind):
        self.a = a
        self.kind = kind
        self.q = []

    def push(self, tag):
        self.q.append(tag)

    def wait(self, tag):
        if tag not in self.q:
            return
        i = len(self.q) - 1 - self.q[::-1].index(tag)
        n = len(self.q) - 1 - i
        if self.kind == "vm":
            self.a.waitcnt(vm=n)
        else:
            self.a.waitcnt(lgkm=min(n, 15))
        self.q = self.q[i + 1:]

    def drain(self):
        if self.kind == "vm":
            self.a.waitcnt(vm=0)
        else:
            self.a.waitcnt(lgkm=0)
        self.q = []


_uid = [0]


def uid(prefix):
    _uid[0] += 1
    return "%s_%d" % (prefix, _uid[0])


def lds_post(a, vaddr, vcnt, inc=1):
    a.valu("v_add_u32", V(vcnt), inc, V(vcnt))
    a.salu("s_mov_b64", "exec", 1)
    a.ds_write("ds_write_b32", vaddr, vcnt, 1)
    a.salu("s_mov_b64", "exec", -1)


def lds_min4(a, v4, stmp):
    a.valu("v_min3_u32", V(v4), V(v4), V(v4 + 1), V(v4 + 2))
    a.valu("v_min_u32", V(v4), V(v4), V(v4 + 3))
    a.readfirstlane(stmp, v4)


def lds_check(a, vflg, off, v4, stmp, sneed, scnt, tail):
    lspin, lback = uid("Lspin"), uid("Lback")

    def emit(a):
        a.label(lspin)
        a.salu("s_mov_b32", S(scnt), 0)
        lp = lspin + "_l"
        a.label(lp)
        a.misc("s_sleep 1")
        a.ds_read("ds_read_b128", v4, 4, vflg, off=off)
        a.waitcnt(lgkm=0)
        lds_min4(a, v4, stmp)
        a.scmp("s_cmp_ge_u32", S(stmp), S(sneed))
        a.branch("s_cbranch_scc1", lback)
        a.salu("s_add_u32", S(scnt), S(scnt), 1)
        a.scmp("s_cmp_lt_u32", S(scnt), SPIN_CAP)
        a.branch("s_cbranch_scc1", lp)
        a.branch("s_branch", lback)

    tail.append(emit)
    lds_min4(a, v4, stmp)
    a.scmp("s_cmp_lt_u32", S(stmp), S(sneed))
    a.lines.append("    s_cbranch_scc1 %s" % lspin)
    a.n_ins += 1
    a.lines.append(lback + ":")


def gen_main(a):
    K = NAME + "_kernel"
    a.raw(".globl %s\n.p2align 8\n.type %s,@function\n%s:" % (K, K, K))
    a.scmp("s_cmp_ge_u32", "s2", 256)
    a.branch("s_cbranch_scc1", "Lm_done")
    a.s_load(36, 4, 0, 0)
    a.s_load(40, 2, 0, 16)
    a.s_load(44, 4, 0, 40)
    a.s_load(48, 2, 0, 56)
    a.s_load(52, 4, 0, 80)
    a.s_load(56, 2, 0, 96)
    a.valu("v_lshrrev_b32", "v1", 6, "v0")
    a.readfirstlane(3, 1)
    a.valu("v_and_b32", "v0", 63, "v0")
    a.valu("v_and_b32", "v1", 31, "v0")
    a.valu("v_lshlrev_b32", "v1", 2, "v1")
    a.valu("v_add_u32", "v1", FLG, "v1")
    a.valu("v_mov_b32", "v2", 0)
    a.ds_write("ds_write_b32", 1, 2, 1)
    a.salu("s_bfe_u32", "s4", "s2", 0x10002)
    a.salu("s_and_b32", "s5", "s2", 3)
    a.salu("s_lshr_b32", "s6", "s2", 3)
    a.salu("s_lshl_b32", "s7", "s4", 5)
    a.salu("s_add_u32", "s7", "s7", "s6")
    a.waitcnt(lgkm=0)
    a.barrier()
    a.scmp("s_cmp_eq_u32", "s4", 1)
    for i in range(6):
        a.salu("s_cselect_b32", S(36 + i), S(44 + i), S(36 + i))
    a.salu("s_lshl_b32", "s58", "s7", 7)
    a.salu("s_add_u32", "s58", "s58", CNT_OFF)
    a.salu("s_add_u32", "s24", "s56", "s58")
    a.salu("s_addc_u32", "s25", "s57", 0)
    a.salu("s_lshl_b32", "s58", "s7", 2)
    a.salu("s_add_u32", "s58", "s58", "s5")
    a.salu("s_lshl_b32", "s59", "s58", 17)
    a.salu("s_add_u32", "s59", "s59", Q_OFF)
    a.salu("s_add_u32", "s60", "s56", "s59")
    a.salu("s_addc_u32", "s61", "s57", 0)
    a.srd(16, 60, 61, 131072)
    a.scmp("s_cmp_ge_u32", "s3", 4)
    a.branch("s_cbranch_scc1", "Lp_start")
    gen_A(a)
    gen_P(a)
    a.label("Lm_done")
    a.raw("    s_endpgm")


A_KB = 2
A_VB = 3
A_QA = 4
A_VO = 5
A_M = 6
A_L0 = 7
A_L1 = 8
A_FLG = 9
A_ONE = 10
A_CNT = 11
A_FW = 12
A_AD = 14
A_T0 = 22
A_T1 = 23
A_T2 = 24
A_T3 = 25
A_CL = 26
A_NM = 32
A_Q = 48
A_O = 80
A_S = 144
A_F = 208
A_NF = 8
SA_O = 20
SA_RS = 29
SA_U = 30
SA_OO = 31
SA_C = 32
SA_NL = 33
SA_T = 34
SA_SP = 63
SA_T2 = 64
SA_THR = 66
KVF = os.environ.get("KVF", "nt")
OSF = os.environ.get("OSF", "sc1")
WOF = os.environ.get("WOF", "")
OLF = os.environ.get("OLF", "sc1")
BURST = int(os.environ.get("BURST", "3"))
NTILE = 72


def a_adv(a):
    a.salu("s_add_u32", S(SA_RS), S(SA_RS), SLOT)
    a.scmp("s_cmp_ge_u32", S(SA_RS), NSLOT * SLOT)
    a.salu("s_cselect_b32", S(SA_RS), 0, S(SA_RS))


def a_top(a, lq, tail):
    stamp(a, 3)
    lq.drain()
    lds_check(a, A_FLG, F_CL, A_CL, SA_T, SA_NL, SA_SP, tail)
    stamp(a, 0)
    a.salu("s_add_u32", S(SA_NL), S(SA_NL), 1)


def a_end(a, lq, inc=1):
    lds_post(a, A_FW, A_CNT, inc)
    lq.push("cdadd")
    a.ds_read("ds_read_b128", A_CL, 4, A_FLG, off=F_CL)
    lq.push("clread")
    a_adv(a)


def a_qstep(a, tail):
    lq = Queue(a, "lgkm")
    lq.push("clread")
    a.salu("s_add_u32", S(SA_NL), S(SA_NL), 1)
    a_top(a, lq, tail)
    a.salu("s_mov_b32", S(SA_T2), S(SA_RS))
    a_adv(a)
    a.scmp("s_cmp_ge_u32", "s3", 2)
    a.salu("s_cselect_b32", S(SA_T2), S(SA_RS), S(SA_T2))
    a.valu("v_add_u32", V(A_AD), S(SA_T2), V(A_QA))
    for s in range(8):
        a.ds_read("ds_read_b128", A_Q + 4 * s, 4, A_AD, off=1024 * s)
    a_unit_init(a)
    a.waitcnt(lgkm=0)
    a_end(a, lq, 2)


def a_step(a, pos, tail):
    lq = Queue(a, "lgkm")
    lq.push("clread")
    a_top(a, lq, tail)
    is_k = pos < 2
    hf = pos & 1
    if is_k:
        a.valu("v_add_u32", V(A_AD), S(SA_RS), V(A_KB))
        for s in range(1, 8):
            a.valu("v_xor_b32", V(A_AD + s), s << 5, V(A_AD))
        seq = [(s, kt) for s in range(8) for kt in range(2)]
    else:
        a.valu("v_add_u32", V(A_AD), S(SA_RS), V(A_VB))
        for dt in range(1, 4):
            a.valu("v_xor_b32", V(A_AD + dt), dt << 6, V(A_AD))
        seq = [(kk, dt) for kk in range(4) for dt in range(4)]
    n = 16
    depth = A_NF - 1

    def rd(i):
        f = A_F + 4 * (i % A_NF)
        if is_k:
            s, kt = seq[i]
            a.ds_read("ds_read_b128", f, 4, A_AD + s, off=kt * 8192)
            lq.push(("f", i))
        else:
            kk, dt = seq[i]
            for t in range(2):
                a.ds_read("ds_read_b64_tr_b16", f + 2 * t, 2, A_AD + dt, off=(16 * kk + 8 * t) * 256)
                lq.push(("f", i) if t else ("f0", i))

    if "nocomp" in EXP:
        a_end(a, lq)
        return
    for i in range(depth):
        rd(i)
    if pos == 2:
        a_softmax(a, lambda: None)
    ended = False
    for i in range(n):
        lq.wait(("f", i))
        if not ended and not any(isinstance(x, tuple) for x in lq.q) and i + depth >= n:
            a_end(a, lq)
            ended = True
        f = A_F + 4 * (i % A_NF)
        if is_k:
            s, kt = seq[i]
            d = A_S + 16 * (2 * hf + kt)
            a.mfma32(d, f, A_Q + 4 * s, A_NM if s == 0 else None)
        else:
            kk, dt = seq[i]
            a.mfma32(A_O + 16 * dt, f, A_S + 16 * hf + 4 * kk)
        if i + depth < n:
            rd(i + depth)
        if i == n - 4 and not ended:
            lq.wait(("f", n - 1))
            a_end(a, lq)
            ended = True
    assert ended


def a_softmax(a, mid):
    S0 = A_S
    a.valu("v_max3_f32", V(A_T0), V(S0), V(S0 + 1), V(S0 + 2))
    a.valu("v_max3_f32", V(A_T1), V(S0 + 3), V(S0 + 4), V(S0 + 5))
    i = 6
    tog = 0
    while i + 1 < 64:
        t = A_T0 if tog == 0 else A_T1
        a.valu("v_max3_f32", V(t), V(t), V(S0 + i), V(S0 + i + 1))
        i += 2
        tog ^= 1
    a.valu("v_max_f32", V(A_T0), V(A_T0), V(A_T1))
    a.valu("v_mov_b32", V(A_T1), V(A_T0))
    a.permlane32_swap(A_T0, A_T1)
    a.valu("v_max_f32", V(A_T0), V(A_T0), V(A_T1))
    lfast = uid("Lfast")
    a.valu("v_cmp_lt_f32", "vcc", S(SA_THR), V(A_T0), extra_w=["vcc"])
    a.branch("s_cbranch_vccz", lfast)
    a.valu("v_max_f32", V(A_T1), S(SA_THR), V(A_T0))
    a.valu("v_max_f32", V(A_T2), 0, V(A_T0))
    a.scmp("s_cmp_eq_u32", S(SA_C), 0)
    a.salu("s_cselect_b64", "vcc", -1, 0)
    a.valu("v_cndmask_b32", V(A_T0), V(A_T2), V(A_T0), "vcc")
    a.valu("v_sub_f32", V(A_T1), 0, V(A_T0))
    a.valu("v_exp_f32", V(A_T1), V(A_T1))
    a.valu("v_cndmask_b32", V(A_T1), V(A_T1), 0, "vcc", mods="")
    a.valu("v_add_f32", V(A_M), V(A_M), V(A_T0))
    a.valu("v_mul_f32", V(A_L0), V(A_L0), V(A_T1))
    a.valu("v_mul_f32", V(A_L1), V(A_L1), V(A_T1))
    for i in range(64):
        a.valu("v_sub_f32", V(S0 + i), V(S0 + i), V(A_T0))
    for i in range(64):
        a.valu("v_mul_f32", V(A_O + i), V(A_O + i), V(A_T1))
    a.valu("v_sub_f32", V(A_NM), 0, V(A_M))
    for i in range(1, 16):
        a.valu("v_mov_b32", V(A_NM + i), V(A_NM))
    a.salu("s_mov_b32", S(SA_THR), f32bits(THRESH))
    a.label(lfast)
    mid()
    for i in range(0, 64, 2):
        a.valu("v_exp_f32", V(S0 + i), V(S0 + i))
        a.valu("v_exp_f32", V(S0 + i + 1), V(S0 + i + 1))
        if i >= 2:
            k = i - 2
            a.valu("v_add_f32", V(A_L0), V(A_L0), V(S0 + k))
            a.valu("v_add_f32", V(A_L1), V(A_L1), V(S0 + k + 1))
            a.valu("v_cvt_pk_bf16_f32", V(S0 + k // 2), V(S0 + k), V(S0 + k + 1))
    a.valu("v_add_f32", V(A_L0), V(A_L0), V(S0 + 62))
    a.valu("v_add_f32", V(A_L1), V(A_L1), V(S0 + 63))
    a.valu("v_cvt_pk_bf16_f32", V(S0 + 31), V(S0 + 62), V(S0 + 63))
    if "ast" in EXP:
        stamp(a, 7)


def a_unit_init(a):
    a.valu("v_mov_b32", V(A_M), 0)
    for i in range(16):
        a.valu("v_mov_b32", V(A_NM + i), 0)
    a.salu("s_mov_b32", S(SA_THR), 0xFF800000)


def gen_A(a):
    tail = []
    diag_init(a)
    a.valu("v_lshrrev_b32", "v1", 4, "v0")
    a.valu("v_and_b32", V(A_T0), 15, "v0")
    a.valu("v_lshrrev_b32", V(A_T2), 5, "v0")
    a.valu("v_xor_b32", V(A_T3), V(A_T2), V(A_T0))
    a.valu("v_and_b32", V(A_KB), 31, "v0")
    a.valu("v_lshlrev_b32", V(A_KB), 8, V(A_KB))
    a.valu("v_lshl_add_u32", V(A_KB), V(A_T3), 4, V(A_KB))
    a.valu("v_bfe_u32", V(A_T3), "v0", 2, 2)
    a.valu("v_lshl_add_u32", V(A_VB), V(A_T2), 2, V(A_T3))
    a.valu("v_lshlrev_b32", V(A_VB), 8, V(A_VB))
    a.valu("v_lshl_add_u32", V(A_VB), V(A_T3), 6, V(A_VB))
    a.valu("v_and_b32", V(A_T3), 1, "v1")
    a.valu("v_lshl_add_u32", V(A_VB), V(A_T3), 5, V(A_VB))
    a.valu("v_and_b32", V(A_AD), 3, "v0")
    a.valu("v_lshl_add_u32", V(A_VB), V(A_AD), 3, V(A_VB))
    a.salu("s_and_b32", "s60", "s3", 1)
    a.salu("s_lshl_b32", "s59", "s60", 13)
    a.valu("v_lshl_add_u32", V(A_QA), "v0", 4, "s59")
    a.salu("s_lshr_b32", "s59", "s3", 1)
    a.salu("s_lshl_b32", "s59", "s59", 14)
    a.salu("s_lshl_b32", "s60", "s60", 10)
    a.salu("s_add_u32", "s59", "s59", "s60")
    a.salu("s_add_u32", "s59", "s59", OBUF)
    a.valu("v_lshl_add_u32", V(A_VO), "v0", 4, "s59")
    a.valu("v_mov_b32", V(A_FLG), FLG)
    for i in range(64):
        a.valu("v_mov_b32", V(A_O + i), 0)
    a.valu("v_mov_b32", V(A_L0), 0)
    a.valu("v_mov_b32", V(A_L1), 0)
    a.valu("v_mov_b32", V(A_ONE), 0)
    a.valu("v_mov_b32", V(A_CNT), 0)
    a.salu("s_lshl_b32", "s59", "s3", 2)
    a.salu("s_add_u32", "s59", "s59", FLG + F_CD)
    a.valu("v_mov_b32", V(A_FW), "s59")
    a.salu("s_mov_b32", S(SA_RS), 0)
    a.salu("s_mov_b32", S(SA_U), 0)
    a.salu("s_mov_b32", S(SA_OO), 0)
    a.ds_read("ds_read_b128", A_CL, 4, A_FLG, off=F_CL)
    a.salu("s_mov_b32", S(SA_NL), 1)
    a.misc("s_setprio 2")
    stamp(a, 4)

    a.label("La_unit")
    a_qstep(a, tail)
    a.salu("s_mov_b32", S(SA_C), 0)
    a.label("La_chunk")
    for pos in range(4):
        a.comment("---- A step pos %d ----" % pos)
        a_step(a, pos, tail)
    a.salu("s_add_u32", S(SA_C), S(SA_C), 1)
    a.scmp("s_cmp_lt_u32", S(SA_C), 4)
    a.branch("s_cbranch_scc1", "La_chunk")
    a.waitcnt(lgkm=0)
    a.ds_read("ds_read_b128", A_AD, 4, A_FLG, off=F_OF)
    a.valu("v_add_f32", V(A_T0), V(A_L0), V(A_L1))
    a.valu("v_mov_b32", V(A_T1), V(A_T0))
    a.permlane32_swap(A_T0, A_T1)
    a.valu("v_add_f32", V(A_T0), V(A_T0), V(A_T1))
    a.valu("v_rcp_f32", V(A_T0), V(A_T0))
    for dt in range(4):
        for kk in range(2):
            b = A_O + 16 * dt + 8 * kk
            d = A_S + 8 * dt + 4 * kk
            for i in range(8):
                a.valu("v_mul_f32", V(b + i), V(b + i), V(A_T0))
            for i in range(0, 8, 2):
                a.valu("v_cvt_pk_bf16_f32", V(d + i // 2), V(b + i), V(b + i + 1))
    stamp(a, 3)
    a.waitcnt(lgkm=0)
    lds_check(a, A_FLG, F_OF, A_AD, SA_T, SA_U, SA_SP, tail)
    stamp(a, 1)
    for f in range(8):
        a.ds_write("ds_write_b128", A_VO, A_S + 4 * f, 4, off=f * 2048)
    a.waitcnt(lgkm=0)
    a.valu("v_add_u32", V(A_T2), F_OW - F_CD, V(A_FW))
    lds_post(a, A_T2, A_ONE)
    a.salu("s_add_u32", S(SA_U), S(SA_U), 1)
    a.scmp("s_cmp_lt_u32", S(SA_U), 4)
    a.branch("s_cbranch_scc1", "La_unit")
    a.waitcnt(lgkm=0)
    stamp(a, 5)
    diag_dump(a, A_T2)
    a.branch("s_branch", "Lm_done")
    for t in tail:
        t(a)


P_FW = 0
P_L16 = 1
P_VDK = 2
P_VDV = 6
P_VDQ = 7
P_ACC = 8
P_OF = 152
P_WF = 168
P_NW = 19
P_FLG = 244
P_CNT = 245
P_OCNT = 246
P_OA = 247
P_F = 248
P_T0 = 248
P_T1 = 249
P_T2 = 250
P_T3 = 251
SP_K = 8
SP_V = 12
SP_Q = 16
SP_X = 20
SP_WO = 28
SP_OUT = 32
SP_YU = 26
SP_W = 27
SP_A = 62
SP_B = 63
SP_T = 64
SP_T2 = 65
SP_PEND = 66
SP_SPIN = 67
SP_I = 68
SP_TN = 69
SP_SH = 70
SP_KN = 71
SP_VN = 72
SP_QN = 73
SP_WS = 74
SP_WLIM = 75
SP_PI = 76
SP_YT = 77
SP_CD = 78
INFL = int(os.environ.get("INFL", "3"))
PHI = int(os.environ.get("PHI", "4"))


def p_issue_tile(a):
    lk, lv, ld = uid("Ltk"), uid("Ltv"), uid("Ltd")
    a.salu("s_mov_b32", "m0", S(SP_WS))
    a.scmp("s_cmp_ge_u32", S(SP_PI), 2)
    a.branch("s_cbranch_scc1", lk)
    for i in range(4):
        a.dma(P_VDQ, SP_Q, S(SP_QN), off=1024 * i)
    a.salu("s_add_u32", S(SP_QN), S(SP_QN), SLOT)
    a.branch("s_branch", ld)
    a.label(lk)
    a.op("s_bitcmp1_b32 %s, 1" % S(SP_PI), "salu", [], [S(SP_PI)])
    a.branch("s_cbranch_scc0", lv)
    for i in range(4):
        a.dma(P_VDK + i, SP_K, S(SP_KN), off=1024 * i, flags=KVF)
    a.salu("s_add_u32", S(SP_KN), S(SP_KN), SLOT)
    a.branch("s_branch", ld)
    a.label(lv)
    for i in range(4):
        a.dma(P_VDV, SP_V, S(SP_VN), off=1024 * i, flags=KVF)
    a.salu("s_add_u32", S(SP_VN), S(SP_VN), SLOT)
    a.label(ld)
    a.salu("s_add_u32", S(SP_WS), S(SP_WS), SLOT)
    a.scmp("s_cmp_ge_u32", S(SP_WS), S(SP_WLIM))
    a.salu("s_cselect_b32", S(SP_T), NSLOT * SLOT, 0)
    a.salu("s_sub_u32", S(SP_WS), S(SP_WS), S(SP_T))
    a.salu("s_add_u32", S(SP_PI), S(SP_PI), 1)
    a.scmp("s_cmp_eq_u32", S(SP_PI), 18)
    a.salu("s_cselect_b32", S(SP_PI), 0, S(SP_PI))
    a.salu("s_add_u32", S(SP_TN), S(SP_TN), 1)


def p_retire_one(a):
    ld = uid("Lrd")
    labs = [uid("Lr") for _ in range(INFL)]
    for k in range(INFL, 1, -1):
        a.scmp("s_cmp_lg_u32", S(SP_PEND), k)
        a.branch("s_cbranch_scc1", labs[k - 1])
        a.waitcnt(vm=4 * (k - 1))
        a.branch("s_branch", ld)
        a.label(labs[k - 1])
    a.waitcnt(vm=0)
    a.label(ld)
    lds_post(a, P_FW, P_CNT)
    a.salu("s_sub_u32", S(SP_PEND), S(SP_PEND), 1)


def gen_y(a):
    vq = Queue(a, "vm")
    lq = Queue(a, "lgkm")
    a.salu("s_mul_i32", S(SP_A), S(SP_YU), 81920)

    def wload(i):
        a.buf_load(P_WF + 4 * (i % P_NW), 4, P_L16, SP_WO, S(SP_A), off=(i & 3) * 1024, flags=WOF)
        vq.push(("w", i))
        if (i & 3) == 3:
            a.salu("s_add_u32", S(SP_A), S(SP_A), 4096)

    def oread(ks):
        for qh in range(2):
            a.ds_read("ds_read_b128", P_OF + 8 * (ks & 1) + 4 * qh, 4, P_OA, off=ks * 2048 + qh * 1024)
            lq.push(("o", ks, qh))

    for i in range(P_NW):
        wload(i)
    oread(0)
    for ks in range(16):
        if ks < 15:
            oread(ks + 1)
        lq.wait(("o", ks, 1))
        if ks == 15:
            a.valu("v_add_u32", V(P_T0), F_OF - F_CL, V(P_FW))
            lds_post(a, P_T0, P_OCNT)
        o0 = P_OF + 8 * (ks & 1)
        o1 = o0 + 4
        for ct in range(5):
            i = 5 * ks + ct
            vq.wait(("w", i))
            w = P_WF + 4 * (i % P_NW)
            if ct < 4:
                a.mfma32(P_ACC + 32 * ct, w, o0)
                a.mfma32(P_ACC + 32 * ct + 16, w, o1)
            else:
                l1, l2 = uid("Lsh"), uid("Lsh")
                a.scmp("s_cmp_lg_u32", S(SP_SH), 0)
                a.lines.append("    s_cbranch_scc1 %s" % l1)
                a.mfma32(P_ACC + 128, w, o0)
                a.lines.append("    s_branch %s" % l2)
                a.lines.append(l1 + ":")
                a.mfma32(P_ACC + 128, w, o1)
                a.lines.append(l2 + ":")
            if i + P_NW < 80:
                wload(i + P_NW)


def gen_P(a):
    a.label("Lp_start")
    diag_init(a)
    a.misc("s_setprio 3")
    a.salu("s_sub_u32", S(SP_W), "s3", 4)
    a.valu("v_lshlrev_b32", V(P_L16), 4, "v0")
    a.salu("s_lshl_b32", "s59", "s6", 4)
    a.salu("s_lshl_b32", "s60", "s5", 2)
    a.salu("s_add_u32", "s59", "s59", "s60")
    a.salu("s_lshl_b32", "s59", "s59", 17)
    a.salu("s_add_u32", "s38", "s38", "s59")
    a.salu("s_addc_u32", "s39", "s39", 0)
    a.salu("s_add_u32", "s40", "s40", "s59")
    a.salu("s_addc_u32", "s41", "s41", 0)
    a.srd(SP_K, 38, 39, 4 * 131072)
    a.srd(SP_V, 40, 41, 4 * 131072)
    a.valu("v_lshrrev_b32", V(P_T2), 4, "v0")
    a.valu("v_and_b32", V(P_T0), 15, "v0")
    a.salu("s_lshl_b32", "s59", S(SP_W), 12)
    a.valu("v_lshl_add_u32", V(P_T1), V(P_T2), 8, "s59")
    for i in range(4):
        a.valu("v_add_u32", V(P_T3), 4 * i, V(P_T2))
        a.valu("v_xor_b32", V(P_T3), V(P_T3), V(P_T0))
        a.valu("v_lshl_add_u32", V(P_VDK + i), V(P_T3), 4, V(P_T1))
    a.valu("v_lshlrev_b32", V(P_T3), 2, V(P_T2))
    a.valu("v_xor_b32", V(P_T3), V(P_T3), V(P_T0))
    a.valu("v_lshl_add_u32", V(P_VDV), V(P_T3), 4, V(P_T1))
    a.valu("v_add_u32", V(P_VDQ), "s59", V(P_L16))
    a.valu("v_mov_b32", V(P_FLG), FLG)
    a.valu("v_mov_b32", V(P_CNT), 0)
    a.valu("v_mov_b32", V(P_OCNT), 0)
    a.valu("v_add_u32", V(P_OA), OBUF, V(P_L16))
    a.salu("s_lshl_b32", "s60", S(SP_W), 2)
    a.salu("s_add_u32", "s60", "s60", FLG + F_CL)
    a.valu("v_mov_b32", V(P_FW), "s60")
    for r in (SP_KN, SP_VN, SP_QN, SP_PI, SP_TN, SP_YU, SP_PEND, SP_SPIN):
        a.salu("s_mov_b32", S(r), 0)
    a.salu("s_mov_b32", S(SP_WS), "s59")
    a.salu("s_add_u32", S(SP_WLIM), S(SP_WS), NSLOT * SLOT)
    for t in range(INFL):
        p_issue_tile(a)
    a.salu("s_mov_b32", S(SP_PEND), INFL)
    a.salu("s_lshl_b32", "s59", "s4", 2)
    a.salu("s_add_u32", "s59", "s59", S(SP_W))
    a.salu("s_lshl_b32", "s59", "s59", 4)
    a.salu("s_lshl_b32", "s60", "s5", 2)
    a.salu("s_add_u32", "s59", "s59", "s60")
    a.salu("s_mul_i32", "s59", "s59", 81920)
    a.salu("s_add_u32", "s59", "s59", WOP_OFF)
    a.salu("s_add_u32", "s60", "s56", "s59")
    a.salu("s_addc_u32", "s61", "s57", 0)
    a.srd(SP_WO, 60, 61, 4 * 81920)
    a.salu("s_mul_i32", "s59", "s7", 16 * 18432)
    a.salu("s_add_u32", "s59", "s59", O_OFF)
    a.salu("s_add_u32", "s60", "s56", "s59")
    a.salu("s_addc_u32", "s61", "s57", 0)
    a.srd(SP_X, 60, 61, 16 * 18432)
    a.srd(SP_OUT, 52, 53, 32 * 64 * 2304)
    a.salu("s_and_b32", S(SP_SH), S(SP_W), 1)
    a.salu("s_and_b32", S(SP_YT), "s6", 3)
    a.salu("s_mul_i32", S(SP_YT), S(SP_YT), PHI)
    a.salu("s_add_u32", S(SP_YT), S(SP_YT), 18)
    for i in range(144):
        a.valu("v_mov_b32", V(P_ACC + i), 0)

    a.label("Lp_loop")
    stamp(a, 5)
    a.scmp("s_cmp_lt_u32", S(SP_PEND), INFL)
    a.branch("s_cbranch_scc1", "Lp_chk")
    p_retire_one(a)
    stamp(a, 1)
    a.label("Lp_chk")
    a.ds_read("ds_read_b128", P_F, 4, P_FLG, off=F_CD)
    a.ds_read("ds_read_b128", P_F + 4, 4, P_FLG, off=F_OW)
    a.waitcnt(lgkm=0)
    lds_min4(a, P_F, SP_CD)
    lds_min4(a, P_F + 4, SP_T2)
    a.scmp("s_cmp_le_u32", S(SP_T2), S(SP_YU))
    a.branch("s_cbranch_scc1", "Lp_tile")
    a.salu("s_min_u32", S(SP_T), S(SP_YT), NTILE)
    a.scmp("s_cmp_ge_u32", S(SP_CD), S(SP_T))
    a.branch("s_cbranch_scc1", "Lp_y")
    a.label("Lp_tile")
    a.scmp("s_cmp_ge_u32", S(SP_TN), NTILE)
    a.branch("s_cbranch_scc1", "Lp_nospace")
    a.salu("s_add_u32", S(SP_T), S(SP_CD), NSLOT)
    a.scmp("s_cmp_ge_u32", S(SP_TN), S(SP_T))
    a.branch("s_cbranch_scc1", "Lp_nospace")
    p_issue_tile(a)
    a.salu("s_add_u32", S(SP_PEND), S(SP_PEND), 1)
    stamp(a, 0)
    a.branch("s_branch", "Lp_loop")
    a.label("Lp_nospace")
    a.scmp("s_cmp_eq_u32", S(SP_PEND), 0)
    a.branch("s_cbranch_scc1", "Lp_nap")
    p_retire_one(a)
    stamp(a, 1)
    a.branch("s_branch", "Lp_loop")
    a.label("Lp_nap")
    a.salu("s_add_u32", S(SP_SPIN), S(SP_SPIN), 1)
    a.scmp("s_cmp_ge_u32", S(SP_SPIN), 4 * SPIN_CAP)
    a.branch("s_cbranch_scc1", "Lp_fin")
    a.misc("s_sleep 1")
    stamp(a, 2)
    a.branch("s_branch", "Lp_loop")

    a.label("Lp_y")
    a.scmp("s_cmp_eq_u32", S(SP_PEND), 0)
    a.branch("s_cbranch_scc1", "Lp_y2")
    p_retire_one(a)
    a.branch("s_branch", "Lp_y")
    a.label("Lp_y2")
    stamp(a, 1)
    gen_y(a)
    stamp(a, 4)
    a.salu("s_add_u32", S(SP_YU), S(SP_YU), 1)
    a.salu("s_add_u32", S(SP_YT), S(SP_YT), 18)
    a.scmp("s_cmp_lt_u32", S(SP_YU), 4)
    a.branch("s_cbranch_scc1", "Lp_loop")
    a.label("Lp_fin")

    a.scmp("s_cmp_eq_u32", S(SP_W), "s5")
    a.branch("s_cbranch_scc1", "Lp_own")
    a.salu("s_lshl_b32", S(SP_T), S(SP_W), 2)
    a.salu("s_add_u32", S(SP_T), S(SP_T), "s5")
    a.salu("s_mul_i32", S(SP_A), S(SP_T), 18432)
    for x in range(18):
        r = P_ACC + 8 * x
        for i in range(4):
            a.valu("v_cvt_pk_bf16_f32", V(r + i), V(r + 2 * i), V(r + 2 * i + 1))
        a.buf_store(r, 4, P_L16, SP_X, S(SP_A), off=(x & 3) * 1024, flags="sc1")
        if (x & 3) == 3:
            a.salu("s_add_u32", S(SP_A), S(SP_A), 4096)
    a.waitcnt(vm=0)
    a.branch("s_branch", "Lp_sent")
    a.label("Lp_own")
    for x in range(36):
        a.ds_write("ds_write_b128", P_L16, P_ACC + 4 * x, 4, off=x * 1024)
    a.waitcnt(lgkm=0)
    a.label("Lp_sent")
    a.valu("v_mov_b32", V(P_T1), 1)
    a.salu("s_mov_b64", "exec", 1)
    a.op("ds_add_rtn_u32 %s, %s, %s offset:%d" % (V(P_T0), V(P_FLG), V(P_T1), F_XC), "ds", [V(P_T0)], [V(P_FLG), V(P_T1)])
    a.salu("s_mov_b64", "exec", -1)
    a.waitcnt(lgkm=0)
    a.readfirstlane(SP_T, P_T0)
    a.valu("v_mov_b32", V(P_T2), 0)
    a.salu("s_mov_b32", S(SP_PEND), S(SP_T))
    a.scmp("s_cmp_lg_u32", S(SP_T), 3)
    a.branch("s_cbranch_scc1", "Lp_xpoll")
    a.salu("s_mov_b64", "exec", 1)
    a.op("global_atomic_add %s, %s, s[24:25]" % (V(P_T2), V(P_T1)), "vmem", [], [V(P_T2), V(P_T1), "s24", "s25"])
    a.salu("s_mov_b64", "exec", -1)
    a.label("Lp_xpoll")
    stamp(a, 6)
    a.valu("v_bfe_u32", V(P_T3), V(P_L16), 4, 5)
    a.valu("v_mul_u32_u24", V(P_T3), 2304, V(P_T3))
    a.valu("v_lshrrev_b32", V(P_T1), 9, V(P_L16))
    a.valu("v_lshl_add_u32", V(P_T3), V(P_T1), 4, V(P_T3))
    a.salu("s_mul_i32", S(SP_KN), "s6", 147456)
    a.salu("s_mul_i32", S(SP_B), "s4", 1152)
    a.salu("s_add_u32", S(SP_KN), S(SP_KN), S(SP_B))
    a.salu("s_add_u32", S(SP_T), "s5", 1)
    a.salu("s_lshr_b32", S(SP_T), S(SP_T), 1)
    a.salu("s_lshl_b32", S(SP_T2), "s5", 2)
    a.salu("s_add_u32", S(SP_T), S(SP_T), S(SP_T2))
    a.salu("s_lshl_b32", S(SP_VN), S(SP_T), 6)
    a.salu("s_lshr_b32", S(SP_T), "s5", 1)
    a.salu("s_mul_i32", S(SP_T), S(SP_T), 9 * 64)
    a.salu("s_add_u32", S(SP_T), S(SP_T), 256)
    a.salu("s_and_b32", S(SP_T2), "s5", 1)
    a.salu("s_mul_i32", S(SP_T2), S(SP_T2), 32 * 2304)
    a.salu("s_add_u32", S(SP_QN), S(SP_T), S(SP_T2))
    a.salu("s_mov_b32", S(SP_SPIN), 0)
    a.scmp("s_cmp_lg_u32", S(SP_PEND), 3)
    a.branch("s_cbranch_scc1", "Lp_xl")
    a.label("Lp_xp")
    a.op("global_load_dword %s, %s, s[24:25] sc1" % (V(P_T0), V(P_T2)), "vmem", [V(P_T0)], [V(P_T2), "s24", "s25"])
    a.waitcnt(vm=0)
    a.readfirstlane(SP_T, P_T0)
    a.scmp("s_cmp_ge_u32", S(SP_T), 4)
    a.branch("s_cbranch_scc1", "Lp_xok")
    a.misc("s_sleep 4")
    a.salu("s_add_u32", S(SP_SPIN), S(SP_SPIN), 1)
    a.scmp("s_cmp_lt_u32", S(SP_SPIN), SPIN_CAP)
    a.branch("s_cbranch_scc1", "Lp_xp")
    a.label("Lp_xok")
    a.valu("v_mov_b32", V(P_T0), 1)
    a.salu("s_mov_b64", "exec", 1)
    a.ds_write("ds_write_b32", P_FLG, P_T0, 1, off=F_XC + 4)
    a.salu("s_mov_b64", "exec", -1)
    a.branch("s_branch", "Lp_xgo")
    a.label("Lp_xl")
    a.misc("s_sleep 1")
    a.ds_read("ds_read_b32", P_T0, 1, P_FLG, off=F_XC + 4)
    a.waitcnt(lgkm=0)
    a.readfirstlane(SP_T, P_T0)
    a.scmp("s_cmp_lg_u32", S(SP_T), 0)
    a.branch("s_cbranch_scc1", "Lp_xgo")
    a.salu("s_add_u32", S(SP_SPIN), S(SP_SPIN), 1)
    a.scmp("s_cmp_lt_u32", S(SP_SPIN), 8 * SPIN_CAP)
    a.branch("s_cbranch_scc1", "Lp_xl")
    a.label("Lp_xgo")
    stamp(a, 7)
    a.salu("s_mul_i32", S(SP_A), "s5", 4 * 18432)
    a.salu("s_lshl_b32", S(SP_T), S(SP_W), 10)
    a.salu("s_add_u32", S(SP_A), S(SP_A), S(SP_T))
    for src in range(4):
        a.scmp("s_cmp_eq_u32", "s5", src)
        a.salu("s_cselect_b32", S(SP_B), 0x10000000, S(SP_A))
        for k in range(5):
            a.buf_load(P_ACC + 20 * src + 4 * k, 4, P_L16, SP_X, S(SP_B), flags="sc1")
            a.salu("s_add_u32", S(SP_B), S(SP_B), 4096)
        a.salu("s_add_u32", S(SP_A), S(SP_A), 18432)
    a.salu("s_lshl_b32", S(SP_T), S(SP_W), 11)
    a.valu("v_add_u32", V(P_T0), S(SP_T), V(P_L16))
    OWN = P_ACC + 80
    for k in range(5):
        for hq in range(2):
            a.ds_read("ds_read_b128", OWN + 8 * k + 4 * hq, 4, P_T0, off=k * 8192 + hq * 1024)
    a.waitcnt(vm=0, lgkm=0)
    for k in range(5):
        for src in range(4):
            for i in range(4):
                pk = P_ACC + 20 * src + 4 * k + i
                a.valu("v_lshlrev_b32", V(P_T0), 16, V(pk))
                a.valu("v_and_b32", V(P_T1), 0xFFFF0000, V(pk))
                a.valu("v_add_f32", V(OWN + 8 * k + 2 * i), V(OWN + 8 * k + 2 * i), V(P_T0))
                a.valu("v_add_f32", V(OWN + 8 * k + 2 * i + 1), V(OWN + 8 * k + 2 * i + 1), V(P_T1))
        r = OWN + 8 * k
        for i in range(4):
            a.valu("v_cvt_pk_bf16_f32", V(r + i), V(r + 2 * i), V(r + 2 * i + 1))
        a.salu("s_add_u32", S(SP_T), S(SP_W), 4 * k)
        a.salu("s_lshr_b32", S(SP_T2), S(SP_T), 2)
        a.salu("s_lshl_b32", S(SP_T2), S(SP_T2), 6)
        a.salu("s_add_u32", S(SP_T2), S(SP_T2), S(SP_VN))
        a.salu("s_bfe_u32", S(SP_I), S(SP_T), 0x10001)
        a.salu("s_mul_i32", S(SP_I), S(SP_I), 32 * 2304)
        a.salu("s_add_u32", S(SP_T2), S(SP_T2), S(SP_I))
        a.scmp("s_cmp_ge_u32", S(SP_T), 16)
        a.salu("s_cselect_b32", S(SP_T2), S(SP_QN), S(SP_T2))
        a.salu("s_and_b32", S(SP_I), S(SP_T), 1)
        a.salu("s_lshl_b32", S(SP_I), S(SP_I), 5)
        a.salu("s_add_u32", S(SP_T2), S(SP_T2), S(SP_I))
        a.salu("s_add_u32", S(SP_T2), S(SP_T2), S(SP_KN))
        a.scmp("s_cmp_ge_u32", S(SP_T), 18)
        a.salu("s_cselect_b32", S(SP_T2), 0x10000000, S(SP_T2))
        a.buf_store(r, 4, P_T3, SP_OUT, S(SP_T2))
    if DIAG:
        a.waitcnt(vm=0)
        stamp(a, 3)
        diag_dump(a, P_T0)
    a.branch("s_branch", "Lm_done")


def main():
    out = sys.argv[1] if len(sys.argv) > 1 else "cdna_kernels/%s.s" % NAME
    a = Asm()
    a.raw(HEADER)
    gen_qproj_kernel(a)
    a.hist = []
    gen_main(a)
    a.raw('.section .rodata,"a"\n.p2align 6')
    a.raw(kd("qproj_kernel", 256, 100 if DIAG else 80, 256))
    a.raw(".p2align 6")
    a.raw(kd(NAME + "_kernel", 256, 100 if DIAG else 80, 256))
    open(out, "w").write(a.text())
    print("wrote %s: %d instructions, %d nop states" % (out, a.n_ins, a.nops_inserted))


if __name__ == "__main__":
    main()
```

```python
import math
import struct
import sys
import os

sys.path.insert(0, os.path.dirname(os.path.abspath(__file__)))
from asmlib import Asm, V, S, vr, sr

NAME = "concat_heads__gqa_block_cached__gqa_block_cached__near_ridge"

WOP_OFF = 0
WOP_SZ = 2 * 4 * 16 * 16 * 5 * 1024
Q_OFF = WOP_OFF + WOP_SZ
Q_SZ = 256 * 4 * 32768
O_OFF = Q_OFF + Q_SZ
O_SZ = 64 * 16 * 18432
CNT_OFF = O_OFF + O_SZ
WS_USED = CNT_OFF + 64 * 128

SLOT = 16384
NSLOT = int(os.environ.get("NSLOT", "7"))
OBUF = NSLOT * SLOT
FLG = OBUF + 32768
LDS_MAIN = FLG + 128
F_CD, F_CL, F_OW, F_OF, F_XC = 0, 16, 32, 48, 64
LDS_Q = 3 * 49152

SCALE = (128 ** -0.5) * math.log2(math.e)
THRESH = 8.0
SPIN_CAP = 300000

DIAG = bool(int(os.environ.get("DIAG", "0")))
EXP = os.environ.get("EXP", "")
DIAG_OFF = 128 << 20


def f32bits(x):
    return struct.unpack("<I", struct.pack("<f", x))[0]


def stamp(a, acc=None):
    if not DIAG:
        return
    a.op("s_memtime s[80:81]", "smem", ["s80", "s81"], [])
    a.waitcnt(lgkm=0)
    if acc is not None:
        a.salu("s_sub_u32", "s83", "s80", "s82")
        a.salu("s_add_u32", S(84 + acc), S(84 + acc), "s83")
    a.salu("s_mov_b32", "s82", "s80")


def diag_init(a):
    if not DIAG:
        return
    for i in range(8):
        a.salu("s_mov_b32", S(84 + i), 0)
    stamp(a)
    a.salu("s_mov_b32", "s92", "s80")
    a.op("s_memrealtime s[96:97]", "smem", ["s96", "s97"], [])
    a.waitcnt(lgkm=0)


def diag_dump(a, tmpv, wslo=56, extra=0):
    if not DIAG:
        return
    stamp(a)
    a.salu("s_sub_u32", "s93", "s80", "s92")
    a.op("s_memrealtime s[98:99]", "smem", ["s98", "s99"], [])
    a.waitcnt(lgkm=0)
    a.salu("s_sub_u32", "s92", "s98", "s96")
    a.salu("s_lshl_b32", "s83", "s2", 3)
    a.salu("s_add_u32", "s83", "s83", "s3")
    a.salu("s_lshl_b32", "s83", "s83", 6)
    a.salu("s_add_u32", "s83", "s83", DIAG_OFF + extra)
    a.salu("s_add_u32", "s94", S(wslo), "s83")
    a.salu("s_addc_u32", "s95", S(wslo + 1), 0)
    a.valu("v_mov_b32", V(tmpv), 0)
    a.salu("s_mov_b64", "exec", 1)
    for i in range(10):
        a.valu("v_mov_b32", V(tmpv + 1), S(84 + i))
        a.op("global_store_dword %s, %s, s[94:95] offset:%d" % (V(tmpv), V(tmpv + 1), 4 * i), "vmem", [],
             [V(tmpv), V(tmpv + 1), "s94", "s95"])
        a.waitcnt(vm=0)
    a.salu("s_mov_b64", "exec", -1)


HEADER = """; Kernarg layout for this problem (104 bytes, ptrs only, base s[0:1]):
;   offset   0: d_in[0] A_x  shape=(32, 64, 576) dtype=bfloat16
;   offset   8: d_in[1] A_k_cache  shape=(32, 16, 512, 128) dtype=bfloat16
;   offset  16: d_in[2] A_v_cache  shape=(32, 16, 512, 128) dtype=bfloat16
;   offset  24: d_in[3] A_wq  shape=(576, 4096) dtype=bfloat16
;   offset  32: d_in[4] A_wo  shape=(4096, 576) dtype=bfloat16
;   offset  40: d_in[5] B_x  shape=(32, 64, 576) dtype=bfloat16
;   offset  48: d_in[6] B_k_cache  shape=(32, 16, 512, 128) dtype=bfloat16
;   offset  56: d_in[7] B_v_cache  shape=(32, 16, 512, 128) dtype=bfloat16
;   offset  64: d_in[8] B_wq  shape=(576, 4096) dtype=bfloat16
;   offset  72: d_in[9] B_wo  shape=(4096, 576) dtype=bfloat16
;   offset  80: d_out     shape=(32, 64, 1152) dtype=bfloat16 (2 bytes/elem)
;   offset  88: d_debug   256 bytes
;   offset  96: d_ws      292028416 bytes workspace
; Generated by gen/gen9.py (hand-written generator).
; @launch kernel=qproj_kernel grid=(256,1,1) block=(512,1,1) lds=%d
; @launch kernel=%s_kernel grid=(256,1,1) block=(512,1,1) lds=%d
.amdgcn_target "amdgcn-amd-amdhsa--gfx950"
.text
""" % (LDS_Q, NAME, LDS_MAIN)


def kd(name, vgpr, sgpr, accum):
    return """.amdhsa_kernel %s
  .amdhsa_next_free_vgpr %d
  .amdhsa_next_free_sgpr %d
  .amdhsa_accum_offset %d
  .amdhsa_group_segment_fixed_size 0
  .amdhsa_kernarg_size 104
  .amdhsa_user_sgpr_count 2
  .amdhsa_user_sgpr_kernarg_segment_ptr 1
  .amdhsa_system_sgpr_workgroup_id_x 1
.end_amdhsa_kernel
""" % (name, vgpr, sgpr, accum)


G_VX = 2
G_VW = 6
G_BC = 8
G_AC = 9
G_BA = 10
G_AA = 14
G_T0 = 16
G_T1 = 17
G_T2 = 18
G_T3 = 19
G_L16 = 20
G_CB = 23
G_WO = 24
G_AF = 48
G_BF = 64
G_ACC = 96
GLF = os.environ.get("GLF", "nt")
QSF = os.environ.get("QSF", "")
QLF = os.environ.get("QLF", "")
KVPF = int(os.environ.get("KVPF", "0"))
ROT = int(os.environ.get("ROT", "0"))
GBUF = 49152
WARM = bool(int(os.environ.get("WARM", "0")))


def gen_qproj_kernel(a):
    a.raw(".globl qproj_kernel\n.p2align 8\n.type qproj_kernel,@function\nqproj_kernel:")
    a.scmp("s_cmp_ge_u32", "s2", 256)
    a.branch("s_cbranch_scc1", "Lg_done")
    diag_init(a)
    a.s_load(36, 8, 0, 0)
    a.s_load(44, 2, 0, 32)
    a.s_load(48, 8, 0, 40)
    a.s_load(56, 2, 0, 72)
    a.s_load(58, 2, 0, 96)
    a.valu("v_lshrrev_b32", "v1", 6, "v0")
    a.readfirstlane(3, 1)
    a.valu("v_lshlrev_b32", V(G_T3), 4, "v0")
    a.valu("v_and_b32", "v0", 63, "v0")
    a.valu("v_lshlrev_b32", V(G_L16), 4, "v0")
    a.salu("s_bfe_u32", "s4", "s2", 0x10002)
    a.salu("s_and_b32", "s5", "s2", 3)
    a.salu("s_bfe_u32", "s6", "s2", 0x20003)
    a.salu("s_lshr_b32", "s7", "s2", 5)
    a.salu("s_lshl_b32", "s26", "s5", 2)
    a.salu("s_add_u32", "s26", "s26", "s6")
    a.valu("v_lshrrev_b32", V(G_T0), 3, "v0")
    a.salu("s_lshl_b32", "s27", "s3", 5)
    a.valu("v_add_u32", V(G_T0), "s27", V(G_T0))
    a.valu("v_mul_u32_u24", V(G_T0), 1152, V(G_T0))
    a.valu("v_and_b32", V(G_T1), 7, "v0")
    a.valu("v_lshrrev_b32", V(G_T2), 4, "v0")
    a.valu("v_xor_b32", V(G_T1), V(G_T1), V(G_T2))
    a.valu("v_lshl_add_u32", V(G_VX), V(G_T1), 4, V(G_T0))
    a.valu("v_add_u32", V(G_VX + 2), 2 * (8 * 1152 - 1024), V(G_VX))
    a.valu("v_xor_b32", V(G_T1), 4, V(G_T1))
    a.valu("v_lshl_add_u32", V(G_VX + 1), V(G_T1), 4, V(G_T0))
    a.valu("v_add_u32", V(G_VX + 1), 8 * 1152 - 1024, V(G_VX + 1))
    a.valu("v_add_u32", V(G_VX + 3), 2 * (8 * 1152 - 1024), V(G_VX + 1))
    a.salu("s_lshl_b32", "s27", "s3", 3)
    a.valu("v_add_u32", V(G_T0), "s27", V(G_T2))
    a.valu("v_lshlrev_b32", V(G_T0), 13, V(G_T0))
    a.valu("v_and_b32", V(G_T1), 15, "v0")
    a.valu("v_lshlrev_b32", V(G_T2), 2, V(G_T2))
    a.valu("v_xor_b32", V(G_T1), V(G_T1), V(G_T2))
    a.valu("v_lshl_add_u32", V(G_VW), V(G_T1), 4, V(G_T0))
    a.valu("v_add_u32", V(G_VW + 1), 4 * 8192 - 1024, V(G_VW))
    a.salu("s_lshl_b32", "s68", "s6", 1)
    a.salu("s_add_u32", "s68", "s68", "s7")
    a.salu("s_mul_i32", "s68", "s68", ROT)
    a.scmp("s_cmp_ge_u32", "s68", 9)
    a.salu("s_cselect_b32", "s28", 9, 0)
    a.salu("s_sub_u32", "s68", "s68", "s28")
    a.salu("s_lshl_b32", "s28", "s68", 7)
    a.salu("s_lshl_b32", "s29", "s68", 19)
    a.salu("s_lshl_b32", "s62", "s26", 9)
    a.salu("s_add_u32", "s29", "s29", "s62")
    a.salu("s_lshl_b32", "s30", "s3", 12)
    a.salu("s_lshl_b32", "s31", "s3", 11)
    a.salu("s_add_u32", "s31", "s31", 32768)
    a.salu("s_mov_b32", "s34", 0)
    a.salu("s_mov_b32", "s63", 0)
    a.waitcnt(lgkm=0)
    a.scmp("s_cmp_eq_u32", "s4", 1)
    for i in range(10):
        a.salu("s_cselect_b32", S(36 + i), S(48 + i), S(36 + i))
    a.salu("s_mul_i32", "s27", "s7", 256 * 1152)
    a.salu("s_add_u32", "s36", "s36", "s27")
    a.salu("s_addc_u32", "s37", "s37", 0)
    a.srd(8, 36, 37, 256 * 1152)
    a.srd(12, 42, 43, 576 * 8192)

    def dma_ops():
        ops = []

        def m0x():
            a.salu("s_add_u32", "s62", "s30", "s34")
            a.salu("s_mov_b32", "m0", "s62")
            a.dma(G_VX, 8, "s28", flags=GLF)
        ops.append(m0x)
        for ii in range(1, 4):
            ops.append(lambda ii=ii: a.dma(G_VX + ii, 8, "s28", off=1024 * ii, flags=GLF))

        def m0w():
            a.salu("s_add_u32", "s62", "s31", "s34")
            a.salu("s_mov_b32", "m0", "s62")
            a.dma(G_VW, 12, "s29", flags=GLF)
        ops.append(m0w)

        def last():
            a.dma(G_VW + 1, 12, "s29", off=1024, flags=GLF)
            a.salu("s_add_u32", "s28", "s28", 128)
            a.salu("s_add_u32", "s29", "s29", 64 * 8192)
            a.salu("s_add_u32", "s34", "s34", GBUF)
            a.scmp("s_cmp_eq_u32", "s34", 3 * GBUF)
            a.salu("s_cselect_b32", "s34", 0, "s34")
            a.salu("s_add_u32", "s63", "s63", 1)
            a.salu("s_add_u32", "s68", "s68", 1)
            a.scmp("s_cmp_eq_u32", "s68", 9)
            a.salu("s_cselect_b32", "s68", 0, "s68")
            a.salu("s_cselect_b32", "s28", 0, "s28")
            a.salu("s_cselect_b32", "s62", 576 * 8192, 0)
            a.salu("s_sub_u32", "s29", "s29", "s62")
            a.scmp("s_cmp_eq_u32", "s63", 9)
            a.salu("s_cselect_b32", "s62", 256, 0)
            a.salu("s_add_u32", "s29", "s29", "s62")
            a.scmp("s_cmp_ge_u32", "s63", 18)
            a.salu("s_cselect_b32", "s28", 0x10000000, "s28")
            a.salu("s_cselect_b32", "s29", 0x10000000, "s29")
            a.salu("s_cselect_b32", "s34", 0x28000, "s34")
        ops.append(last)
        return ops

    for _ in range(2):
        for f in dma_ops():
            f()
    if WARM:
        a.salu("s_mul_i32", "s60", "s7", 256 * 1152)
        a.salu("s_sub_u32", "s60", "s36", "s60")
        a.salu("s_subb_u32", "s61", "s37", 0)
        a.srd(16, 60, 61, 2048 * 1152)
        a.salu("s_mov_b32", "m0", 0x28000)
        a.salu("s_lshr_b32", "s33", "s2", 3)
        for i in range(5):
            a.salu("s_add_u32", "s60", "s3", 8 * i)
            a.salu("s_lshr_b32", "s61", "s60", 1)
            a.salu("s_mul_i32", "s62", "s33", 18)
            a.salu("s_add_u32", "s61", "s61", "s62")
            a.salu("s_lshl_b32", "s61", "s61", 13)
            a.salu("s_and_b32", "s62", "s60", 1)
            a.salu("s_lshl_b32", "s62", "s62", 10)
            a.salu("s_add_u32", "s61", "s61", "s62")
            a.salu("s_lshl_b32", "s62", "s5", 11)
            a.salu("s_add_u32", "s61", "s61", "s62")
            a.scmp("s_cmp_ge_u32", "s60", 36)
            a.salu("s_cselect_b32", "s61", 0x10000000, "s61")
            a.buf_load(192 + 4 * i, 4, G_L16, 12, "s61", flags=GLF)
        a.salu("s_mul_i32", "s60", "s33", 73728)
        a.salu("s_mul_i32", "s61", "s3", 9216)
        a.salu("s_add_u32", "s60", "s60", "s61")
        for i in range(9):
            a.buf_load(212 + 4 * i, 4, G_L16, 16, "s60", off=(i & 3) * 1024, flags=GLF)
            if (i & 3) == 3:
                a.salu("s_add_u32", "s60", "s60", 4096)
    a.salu("s_and_b32", "s32", "s2", 3)
    a.salu("s_lshl_b32", "s32", "s32", 5)
    a.salu("s_lshr_b32", "s33", "s2", 3)
    a.salu("s_add_u32", "s32", "s32", "s33")
    a.salu("s_mul_i32", "s33", "s32", 36864)
    a.salu("s_add_u32", "s44", "s44", "s33")
    a.salu("s_addc_u32", "s45", "s45", 0)
    a.srd(16, 44, 45, 36864)
    a.salu("s_mov_b32", "s33", 0)
    for i in range(5):
        a.buf_load(G_WO + 4 * i, 4, G_T3, 16, "s33", flags="nt")
        if i < 4:
            a.salu("s_add_u32", "s33", "s33", 8192)
    if KVPF:
        a.salu("s_lshr_b32", "s33", "s2", 3)
        a.salu("s_lshl_b32", "s33", "s33", 4)
        a.salu("s_lshl_b32", "s60", "s5", 2)
        a.salu("s_add_u32", "s33", "s33", "s60")
        a.salu("s_lshl_b32", "s33", "s33", 17)
        a.scmp("s_cmp_ge_u32", "s3", 4)
        a.salu("s_cselect_b32", "s38", "s40", "s38")
        a.salu("s_cselect_b32", "s39", "s41", "s39")
        a.salu("s_add_u32", "s38", "s38", "s33")
        a.salu("s_addc_u32", "s39", "s39", 0)
        a.srd(72, 38, 39, 4 * 131072)
        a.salu("s_and_b32", "s76", "s3", 3)
        a.salu("s_mul_i32", "s76", "s76", 1024 * KVPF)
    a.salu("s_and_b32", "s27", "s3", 1)
    a.salu("s_lshr_b32", "s35", "s3", 1)
    a.valu("v_and_b32", V(G_T0), 31, "v0")
    a.valu("v_bfe_u32", V(G_T1), "v0", 1, 3)
    a.valu("v_lshrrev_b32", V(G_T2), 5, "v0")
    a.valu("v_xor_b32", V(G_T1), V(G_T1), V(G_T2))
    a.valu("v_lshlrev_b32", V(G_T0), 7, V(G_T0))
    a.valu("v_lshl_add_u32", V(G_T0), V(G_T1), 4, V(G_T0))
    a.salu("s_lshl_b32", "s33", "s35", 13)
    a.valu("v_add_u32", V(G_BC), "s33", V(G_T0))
    a.valu("v_bfe_u32", V(G_CB), "v0", 4, 1)
    a.valu("v_lshlrev_b32", V(G_CB), 5, V(G_CB))
    a.valu("v_and_b32", V(G_T0), 1, "v0")
    a.valu("v_lshl_add_u32", V(G_CB), V(G_T0), 4, V(G_CB))
    a.valu("v_bfe_u32", V(G_T0), "v0", 1, 1)
    a.valu("v_lshl_add_u32", V(G_CB), V(G_T0), 3, V(G_CB))
    a.valu("v_bfe_u32", V(G_T1), "v0", 2, 2)
    a.salu("s_lshl_b32", "s33", "s27", 7)
    a.valu("v_add_u32", V(G_T0), "s33", V(G_CB))
    a.valu("v_lshlrev_b32", V(G_AC), 6, V(G_T1))
    a.valu("v_xor_b32", V(G_T0), V(G_T0), V(G_AC))
    a.valu("v_lshl_add_u32", V(G_AC), V(G_T2), 3, V(G_T1))
    a.valu("v_lshl_add_u32", V(G_AC), V(G_AC), 8, V(G_T0))
    a.valu("v_add_u32", V(G_AC), 32768, V(G_AC))
    a.salu("s_lshl_b32", "s64", "s4", 5)
    a.salu("s_lshl_b32", "s65", "s7", 2)
    a.salu("s_add_u32", "s64", "s64", "s65")
    a.salu("s_add_u32", "s64", "s64", "s35")
    a.salu("s_lshl_b32", "s64", "s64", 2)
    a.salu("s_add_u32", "s64", "s64", "s5")
    a.salu("s_lshl_b32", "s64", "s64", 17)
    a.salu("s_lshl_b32", "s65", "s6", 15)
    a.salu("s_add_u32", "s64", "s64", "s65")
    a.salu("s_lshl_b32", "s65", "s27", 12)
    a.salu("s_add_u32", "s64", "s64", "s65")
    a.salu("s_add_u32", "s60", "s58", Q_OFF)
    a.salu("s_addc_u32", "s61", "s59", 0)
    a.srd(20, 60, 61, Q_SZ)
    a.salu("s_mov_b32", "s66", f32bits(SCALE))
    a.salu("s_mov_b32", "s33", 0)
    a.salu("s_mov_b32", "s67", 0)
    for i in range(64):
        a.valu("v_mov_b32", V(G_ACC + i), 0)
    stamp(a, 0)
    a.waitcnt(vm=25 if WARM else 11)
    stamp(a, 1)

    a.label("Lg_loop")
    a.barrier()
    stamp(a, 2)
    a.valu("v_add_u32", V(G_BA), "s67", V(G_BC))
    a.valu("v_add_u32", V(G_AA), "s67", V(G_AC))
    a.valu("v_xor_b32", V(G_AA + 1), 64, V(G_AA))

    def rd(ks):
        b = ks & 1
        if ks:
            a.valu("v_xor_b32", V(G_BA + ks), ks << 5, V(G_BA))
        if "gnolds" in EXP:
            return
        for dtl in range(2):
            for t in range(2):
                a.ds_read("ds_read_b64_tr_b16", G_AF + 8 * b + 4 * dtl + 2 * t, 2, G_AA + dtl, off=(16 * ks + 4 * t) * 256)
        for qt in range(2):
            a.ds_read("ds_read_b128", G_BF + 8 * b + 4 * qt, 4, G_BA + ks, off=4096 * qt)

    ops = dma_ops()
    rd(0)
    for ks in range(4):
        if ks < 3:
            rd(ks + 1)
            a.waitcnt(lgkm=6)
        else:
            a.waitcnt(lgkm=0)
        b = ks & 1
        for dtl in range(2):
            for qt in range(2):
                if "gnomfma" not in EXP:
                    a.mfma32(G_ACC + 32 * dtl + 16 * qt, G_AF + 8 * b + 4 * dtl, G_BF + 8 * b + 4 * qt)
                if ops and qt == 1:
                    f = ops.pop(0)
                    if "gnodma" not in EXP:
                        f()
    assert not ops
    for i in range(KVPF):
        a.buf_load(200 + 4 * i, 4, G_L16, 72, "s76", off=1024 * i)
    if KVPF:
        a.salu("s_add_u32", "s76", "s76", 4096 * KVPF)
    a.salu("s_add_u32", "s67", "s67", GBUF)
    a.scmp("s_cmp_eq_u32", "s67", 3 * GBUF)
    a.salu("s_cselect_b32", "s67", 0, "s67")
    a.salu("s_add_u32", "s33", "s33", 1)
    stamp(a, 3)
    a.waitcnt(vm=6 + 2 * KVPF)
    stamp(a, 4)
    a.scmp("s_cmp_eq_u32", "s33", 9)
    a.branch("s_cbranch_scc1", "Lg_epi")
    a.scmp("s_cmp_lt_u32", "s33", 18)
    a.branch("s_cbranch_scc1", "Lg_loop")

    a.barrier()
    for i in range(5):
        a.ds_write("ds_write_b128", G_T3, G_WO + 4 * i, 4, off=i * 8192)
    a.salu("s_add_u32", "s60", "s58", CNT_OFF)
    a.salu("s_addc_u32", "s61", "s59", 0)
    a.srd(16, 60, 61, 64 * 128)
    a.salu("s_lshl_b32", "s28", "s2", 7)
    a.scmp("s_cmp_lg_u32", "s3", 0)
    a.salu("s_cselect_b32", "s28", 0x10000000, "s28")
    a.valu("v_and_b32", V(G_T0), 31, "v0")
    a.valu("v_lshlrev_b32", V(G_T0), 2, V(G_T0))
    a.valu("v_mov_b32", V(G_T1), 0)
    a.buf_store(G_T1, 1, G_T0, 16, "s28")
    a.srd(12, 58, 59, WOP_SZ)
    a.valu("v_lshrrev_b32", V(G_T2), 5, "v0")
    a.valu("v_bfe_u32", V(G_T1), "v0", 2, 2)
    a.valu("v_lshl_add_u32", V(G_T0), V(G_T2), 2, V(G_T1))
    a.valu("v_mul_u32_u24", V(G_T0), 1152, V(G_T0))
    a.valu("v_add_u32", V(G_T0), V(G_T0), V(G_CB))
    a.salu("s_mul_i32", "s28", "s27", 16 * 1152)
    a.salu("s_add_u32", "s29", "s35", 1)
    a.salu("s_lshr_b32", "s29", "s29", 1)
    a.salu("s_lshl_b32", "s30", "s35", 2)
    a.salu("s_add_u32", "s29", "s29", "s30")
    a.salu("s_lshl_b32", "s29", "s29", 6)
    a.salu("s_add_u32", "s29", "s29", "s28")
    a.valu("v_add_u32", V(G_T1), "s29", V(G_T0))
    a.salu("s_lshr_b32", "s29", "s35", 1)
    a.salu("s_mul_i32", "s29", "s29", 9 * 64)
    a.salu("s_add_u32", "s29", "s29", 256)
    a.salu("s_add_u32", "s29", "s29", "s28")
    a.valu("v_add_u32", V(G_T2), "s29", V(G_T0))
    a.salu("s_lshl_b32", "s28", "s4", 2)
    a.salu("s_add_u32", "s28", "s28", "s35")
    a.salu("s_lshl_b32", "s28", "s28", 7)
    a.salu("s_add_u32", "s28", "s28", "s32")
    a.salu("s_mul_i32", "s28", "s28", 10240)
    a.salu("s_mul_i32", "s29", "s27", 5120)
    a.salu("s_add_u32", "s28", "s28", "s29")
    a.salu("s_add_u32", "s29", "s28", 4096)
    a.waitcnt(lgkm=0)
    a.barrier()
    for ct in range(5):
        for t in range(2):
            if ct < 4:
                a.ds_read("ds_read_b64_tr_b16", G_AF + 4 * ct + 2 * t, 2, G_T1, off=8 * t * 1152 + 64 * ct)
            else:
                a.ds_read("ds_read_b64_tr_b16", G_AF + 4 * ct + 2 * t, 2, G_T2, off=8 * t * 1152)
    for ct in range(5):
        a.waitcnt(lgkm=8 - 2 * ct)
        a.buf_store(G_AF + 4 * ct, 4, G_L16, 12, "s28" if ct < 4 else "s29", off=(ct & 3) * 1024, flags=QSF)
    stamp(a, 6)

    a.label("Lg_epi")
    for qt in range(2):
        a.salu("s_add_u32", "s65", "s64", qt * 8192)
        for dtl in range(2):
            for hf in range(2):
                b = G_ACC + 32 * dtl + 16 * qt + 8 * hf
                d = G_ACC + 64 + 4 * (4 * qt + 2 * dtl + hf)
                for i in range(8):
                    a.valu("v_mul_f32", V(b + i), "s66", V(b + i))
                for i in range(0, 8, 2):
                    a.valu("v_cvt_pk_bf16_f32", V(d + i // 2), V(b + i), V(b + i + 1))
                a.buf_store(d, 4, G_L16, 20, "s65", off=dtl * 2048 + hf * 1024, flags=QSF)
    a.salu("s_add_u32", "s64", "s64", 16384)
    for i in range(64):
        a.valu("v_mov_b32", V(G_ACC + i), 0)
    stamp(a, 5)
    a.scmp("s_cmp_eq_u32", "s33", 9)
    a.branch("s_cbranch_scc1", "Lg_loop")
    if DIAG:
        a.waitcnt(vm=0)
        stamp(a, 7)
        diag_dump(a, G_T0, 58, 1 << 20)
    a.label("Lg_done")
    a.raw("    s_endpgm")


class Queue:
    def __init__(self, a, kind):
        self.a = a
        self.kind = kind
        self.q = []

    def push(self, tag):
        self.q.append(tag)

    def wait(self, tag):
        if tag not in self.q:
            return
        i = len(self.q) - 1 - self.q[::-1].index(tag)
        n = len(self.q) - 1 - i
        if self.kind == "vm":
            self.a.waitcnt(vm=n)
        else:
            self.a.waitcnt(lgkm=min(n, 15))
        self.q = self.q[i + 1:]

    def drain(self):
        if self.kind == "vm":
            self.a.waitcnt(vm=0)
        else:
            self.a.waitcnt(lgkm=0)
        self.q = []


_uid = [0]


def uid(prefix):
    _uid[0] += 1
    return "%s_%d" % (prefix, _uid[0])


def lds_post(a, vaddr, vcnt, inc=1):
    a.valu("v_add_u32", V(vcnt), inc, V(vcnt))
    a.salu("s_mov_b64", "exec", 1)
    a.ds_write("ds_write_b32", vaddr, vcnt, 1)
    a.salu("s_mov_b64", "exec", -1)


def lds_min4(a, v4, stmp):
    a.valu("v_min3_u32", V(v4), V(v4), V(v4 + 1), V(v4 + 2))
    a.valu("v_min_u32", V(v4), V(v4), V(v4 + 3))
    a.readfirstlane(stmp, v4)


def lds_check(a, vflg, off, v4, stmp, sneed, scnt, tail):
    lspin, lback = uid("Lspin"), uid("Lback")

    def emit(a):
        a.label(lspin)
        a.salu("s_mov_b32", S(scnt), 0)
        lp = lspin + "_l"
        a.label(lp)
        a.misc("s_sleep 1")
        a.ds_read("ds_read_b128", v4, 4, vflg, off=off)
        a.waitcnt(lgkm=0)
        lds_min4(a, v4, stmp)
        a.scmp("s_cmp_ge_u32", S(stmp), S(sneed))
        a.branch("s_cbranch_scc1", lback)
        a.salu("s_add_u32", S(scnt), S(scnt), 1)
        a.scmp("s_cmp_lt_u32", S(scnt), SPIN_CAP)
        a.branch("s_cbranch_scc1", lp)
        a.branch("s_branch", lback)

    tail.append(emit)
    lds_min4(a, v4, stmp)
    a.scmp("s_cmp_lt_u32", S(stmp), S(sneed))
    a.lines.append("    s_cbranch_scc1 %s" % lspin)
    a.n_ins += 1
    a.lines.append(lback + ":")


def gen_main(a):
    K = NAME + "_kernel"
    a.raw(".globl %s\n.p2align 8\n.type %s,@function\n%s:" % (K, K, K))
    a.scmp("s_cmp_ge_u32", "s2", 256)
    a.branch("s_cbranch_scc1", "Lm_done")
    a.s_load(36, 4, 0, 0)
    a.s_load(40, 2, 0, 16)
    a.s_load(44, 4, 0, 40)
    a.s_load(48, 2, 0, 56)
    a.s_load(52, 4, 0, 80)
    a.s_load(56, 2, 0, 96)
    a.valu("v_lshrrev_b32", "v1", 6, "v0")
    a.readfirstlane(3, 1)
    a.valu("v_and_b32", "v0", 63, "v0")
    a.valu("v_and_b32", "v1", 31, "v0")
    a.valu("v_lshlrev_b32", "v1", 2, "v1")
    a.valu("v_add_u32", "v1", FLG, "v1")
    a.valu("v_mov_b32", "v2", 0)
    a.ds_write("ds_write_b32", 1, 2, 1)
    a.salu("s_bfe_u32", "s4", "s2", 0x10002)
    a.salu("s_and_b32", "s5", "s2", 3)
    a.salu("s_lshr_b32", "s6", "s2", 3)
    a.salu("s_lshl_b32", "s7", "s4", 5)
    a.salu("s_add_u32", "s7", "s7", "s6")
    a.waitcnt(lgkm=0)
    a.barrier()
    a.scmp("s_cmp_eq_u32", "s4", 1)
    for i in range(6):
        a.salu("s_cselect_b32", S(36 + i), S(44 + i), S(36 + i))
    a.salu("s_lshl_b32", "s58", "s7", 7)
    a.salu("s_add_u32", "s58", "s58", CNT_OFF)
    a.salu("s_add_u32", "s24", "s56", "s58")
    a.salu("s_addc_u32", "s25", "s57", 0)
    a.salu("s_lshl_b32", "s58", "s7", 2)
    a.salu("s_add_u32", "s58", "s58", "s5")
    a.salu("s_lshl_b32", "s59", "s58", 17)
    a.salu("s_add_u32", "s59", "s59", Q_OFF)
    a.salu("s_add_u32", "s60", "s56", "s59")
    a.salu("s_addc_u32", "s61", "s57", 0)
    a.srd(16, 60, 61, 131072)
    a.scmp("s_cmp_ge_u32", "s3", 4)
    a.branch("s_cbranch_scc1", "Lp_start")
    gen_A(a)
    gen_P(a)
    a.label("Lm_done")
    a.raw("    s_endpgm")


A_KB = 2
A_VB = 3
A_QA = 4
A_VO = 5
A_M = 6
A_L0 = 7
A_L1 = 8
A_FLG = 9
A_ONE = 10
A_CNT = 11
A_FW = 12
A_AD = 14
A_T0 = 22
A_T1 = 23
A_T2 = 24
A_T3 = 25
A_CL = 26
A_NM = 32
A_Q = 48
A_O = 80
A_S = 144
A_F = 208
A_NF = 8
SA_O = 20
SA_RS = 29
SA_U = 30
SA_OO = 31
SA_C = 32
SA_NL = 33
SA_T = 34
SA_SP = 63
SA_T2 = 64
SA_THR = 66
KVF = os.environ.get("KVF", "nt")
OSF = os.environ.get("OSF", "sc1")
WOF = os.environ.get("WOF", "")
OLF = os.environ.get("OLF", "sc1")
BURST = int(os.environ.get("BURST", "3"))
NTILE = 72


def a_adv(a):
    a.salu("s_add_u32", S(SA_RS), S(SA_RS), SLOT)
    a.scmp("s_cmp_ge_u32", S(SA_RS), NSLOT * SLOT)
    a.salu("s_cselect_b32", S(SA_RS), 0, S(SA_RS))


def a_top(a, lq, tail):
    stamp(a, 3)
    lq.drain()
    lds_check(a, A_FLG, F_CL, A_CL, SA_T, SA_NL, SA_SP, tail)
    stamp(a, 0)
    a.salu("s_add_u32", S(SA_NL), S(SA_NL), 1)


def a_end(a, lq, inc=1):
    lds_post(a, A_FW, A_CNT, inc)
    lq.push("cdadd")
    a.ds_read("ds_read_b128", A_CL, 4, A_FLG, off=F_CL)
    lq.push("clread")
    a_adv(a)


def a_qstep(a, tail):
    lq = Queue(a, "lgkm")
    lq.push("clread")
    a.salu("s_add_u32", S(SA_NL), S(SA_NL), 1)
    a_top(a, lq, tail)
    a.salu("s_mov_b32", S(SA_T2), S(SA_RS))
    a_adv(a)
    a.scmp("s_cmp_ge_u32", "s3", 2)
    a.salu("s_cselect_b32", S(SA_T2), S(SA_RS), S(SA_T2))
    a.valu("v_add_u32", V(A_AD), S(SA_T2), V(A_QA))
    for s in range(8):
        a.ds_read("ds_read_b128", A_Q + 4 * s, 4, A_AD, off=1024 * s)
    a_unit_init(a)
    a.waitcnt(lgkm=0)
    a_end(a, lq, 2)


def a_step(a, pos, tail):
    lq = Queue(a, "lgkm")
    lq.push("clread")
    a_top(a, lq, tail)
    is_k = pos < 2
    hf = pos & 1
    if is_k:
        a.valu("v_add_u32", V(A_AD), S(SA_RS), V(A_KB))
        for s in range(1, 8):
            a.valu("v_xor_b32", V(A_AD + s), s << 5, V(A_AD))
        seq = [(s, kt) for s in range(8) for kt in range(2)]
    else:
        a.valu("v_add_u32", V(A_AD), S(SA_RS), V(A_VB))
        for dt in range(1, 4):
            a.valu("v_xor_b32", V(A_AD + dt), dt << 6, V(A_AD))
        seq = [(kk, dt) for kk in range(4) for dt in range(4)]
    n = 16
    depth = A_NF - 1

    def rd(i):
        f = A_F + 4 * (i % A_NF)
        if is_k:
            s, kt = seq[i]
            a.ds_read("ds_read_b128", f, 4, A_AD + s, off=kt * 8192)
            lq.push(("f", i))
        else:
            kk, dt = seq[i]
            for t in range(2):
                a.ds_read("ds_read_b64_tr_b16", f + 2 * t, 2, A_AD + dt, off=(16 * kk + 8 * t) * 256)
                lq.push(("f", i) if t else ("f0", i))

    if "nocomp" in EXP:
        a_end(a, lq)
        return
    for i in range(depth):
        rd(i)
    if pos == 2:
        a_softmax(a, lambda: None)
    ended = False
    for i in range(n):
        lq.wait(("f", i))
        if not ended and not any(isinstance(x, tuple) for x in lq.q) and i + depth >= n:
            a_end(a, lq)
            ended = True
        f = A_F + 4 * (i % A_NF)
        if is_k:
            s, kt = seq[i]
            d = A_S + 16 * (2 * hf + kt)
            a.mfma32(d, f, A_Q + 4 * s, A_NM if s == 0 else None)
        else:
            kk, dt = seq[i]
            a.mfma32(A_O + 16 * dt, f, A_S + 16 * hf + 4 * kk)
        if i + depth < n:
            rd(i + depth)
        if i == n - 4 and not ended:
            lq.wait(("f", n - 1))
            a_end(a, lq)
            ended = True
    assert ended


def a_softmax(a, mid):
    S0 = A_S
    a.valu("v_max3_f32", V(A_T0), V(S0), V(S0 + 1), V(S0 + 2))
    a.valu("v_max3_f32", V(A_T1), V(S0 + 3), V(S0 + 4), V(S0 + 5))
    i = 6
    tog = 0
    while i + 1 < 64:
        t = A_T0 if tog == 0 else A_T1
        a.valu("v_max3_f32", V(t), V(t), V(S0 + i), V(S0 + i + 1))
        i += 2
        tog ^= 1
    a.valu("v_max_f32", V(A_T0), V(A_T0), V(A_T1))
    a.valu("v_mov_b32", V(A_T1), V(A_T0))
    a.permlane32_swap(A_T0, A_T1)
    a.valu("v_max_f32", V(A_T0), V(A_T0), V(A_T1))
    lfast = uid("Lfast")
    a.valu("v_cmp_lt_f32", "vcc", S(SA_THR), V(A_T0), extra_w=["vcc"])
    a.branch("s_cbranch_vccz", lfast)
    a.valu("v_max_f32", V(A_T1), S(SA_THR), V(A_T0))
    a.valu("v_max_f32", V(A_T2), 0, V(A_T0))
    a.scmp("s_cmp_eq_u32", S(SA_C), 0)
    a.salu("s_cselect_b64", "vcc", -1, 0)
    a.valu("v_cndmask_b32", V(A_T0), V(A_T2), V(A_T0), "vcc")
    a.valu("v_sub_f32", V(A_T1), 0, V(A_T0))
    a.valu("v_exp_f32", V(A_T1), V(A_T1))
    a.valu("v_cndmask_b32", V(A_T1), V(A_T1), 0, "vcc", mods="")
    a.valu("v_add_f32", V(A_M), V(A_M), V(A_T0))
    a.valu("v_mul_f32", V(A_L0), V(A_L0), V(A_T1))
    a.valu("v_mul_f32", V(A_L1), V(A_L1), V(A_T1))
    for i in range(64):
        a.valu("v_sub_f32", V(S0 + i), V(S0 + i), V(A_T0))
    for i in range(64):
        a.valu("v_mul_f32", V(A_O + i), V(A_O + i), V(A_T1))
    a.valu("v_sub_f32", V(A_NM), 0, V(A_M))
    for i in range(1, 16):
        a.valu("v_mov_b32", V(A_NM + i), V(A_NM))
    a.salu("s_mov_b32", S(SA_THR), f32bits(THRESH))
    a.label(lfast)
    mid()
    for i in range(0, 64, 2):
        a.valu("v_exp_f32", V(S0 + i), V(S0 + i))
        a.valu("v_exp_f32", V(S0 + i + 1), V(S0 + i + 1))
        if i >= 2:
            k = i - 2
            a.valu("v_add_f32", V(A_L0), V(A_L0), V(S0 + k))
            a.valu("v_add_f32", V(A_L1), V(A_L1), V(S0 + k + 1))
            a.valu("v_cvt_pk_bf16_f32", V(S0 + k // 2), V(S0 + k), V(S0 + k + 1))
    a.valu("v_add_f32", V(A_L0), V(A_L0), V(S0 + 62))
    a.valu("v_add_f32", V(A_L1), V(A_L1), V(S0 + 63))
    a.valu("v_cvt_pk_bf16_f32", V(S0 + 31), V(S0 + 62), V(S0 + 63))
    if "ast" in EXP:
        stamp(a, 7)


def a_unit_init(a):
    a.valu("v_mov_b32", V(A_M), 0)
    for i in range(16):
        a.valu("v_mov_b32", V(A_NM + i), 0)
    a.salu("s_mov_b32", S(SA_THR), 0xFF800000)


def gen_A(a):
    tail = []
    diag_init(a)
    a.valu("v_lshrrev_b32", "v1", 4, "v0")
    a.valu("v_and_b32", V(A_T0), 15, "v0")
    a.valu("v_lshrrev_b32", V(A_T2), 5, "v0")
    a.valu("v_xor_b32", V(A_T3), V(A_T2), V(A_T0))
    a.valu("v_and_b32", V(A_KB), 31, "v0")
    a.valu("v_lshlrev_b32", V(A_KB), 8, V(A_KB))
    a.valu("v_lshl_add_u32", V(A_KB), V(A_T3), 4, V(A_KB))
    a.valu("v_bfe_u32", V(A_T3), "v0", 2, 2)
    a.valu("v_lshl_add_u32", V(A_VB), V(A_T2), 2, V(A_T3))
    a.valu("v_lshlrev_b32", V(A_VB), 8, V(A_VB))
    a.valu("v_lshl_add_u32", V(A_VB), V(A_T3), 6, V(A_VB))
    a.valu("v_and_b32", V(A_T3), 1, "v1")
    a.valu("v_lshl_add_u32", V(A_VB), V(A_T3), 5, V(A_VB))
    a.valu("v_and_b32", V(A_AD), 3, "v0")
    a.valu("v_lshl_add_u32", V(A_VB), V(A_AD), 3, V(A_VB))
    a.salu("s_and_b32", "s60", "s3", 1)
    a.salu("s_lshl_b32", "s59", "s60", 13)
    a.valu("v_lshl_add_u32", V(A_QA), "v0", 4, "s59")
    a.salu("s_lshr_b32", "s59", "s3", 1)
    a.salu("s_lshl_b32", "s59", "s59", 14)
    a.salu("s_lshl_b32", "s60", "s60", 10)
    a.salu("s_add_u32", "s59", "s59", "s60")
    a.salu("s_add_u32", "s59", "s59", OBUF)
    a.valu("v_lshl_add_u32", V(A_VO), "v0", 4, "s59")
    a.valu("v_mov_b32", V(A_FLG), FLG)
    for i in range(64):
        a.valu("v_mov_b32", V(A_O + i), 0)
    a.valu("v_mov_b32", V(A_L0), 0)
    a.valu("v_mov_b32", V(A_L1), 0)
    a.valu("v_mov_b32", V(A_ONE), 0)
    a.valu("v_mov_b32", V(A_CNT), 0)
    a.salu("s_lshl_b32", "s59", "s3", 2)
    a.salu("s_add_u32", "s59", "s59", FLG + F_CD)
    a.valu("v_mov_b32", V(A_FW), "s59")
    a.salu("s_mov_b32", S(SA_RS), 0)
    a.salu("s_mov_b32", S(SA_U), 0)
    a.salu("s_mov_b32", S(SA_OO), 0)
    a.ds_read("ds_read_b128", A_CL, 4, A_FLG, off=F_CL)
    a.salu("s_mov_b32", S(SA_NL), 1)
    a.misc("s_setprio 2")
    stamp(a, 4)

    a.label("La_unit")
    a_qstep(a, tail)
    a.salu("s_mov_b32", S(SA_C), 0)
    a.label("La_chunk")
    for pos in range(4):
        a.comment("---- A step pos %d ----" % pos)
        a_step(a, pos, tail)
    a.salu("s_add_u32", S(SA_C), S(SA_C), 1)
    a.scmp("s_cmp_lt_u32", S(SA_C), 4)
    a.branch("s_cbranch_scc1", "La_chunk")
    a.waitcnt(lgkm=0)
    a.ds_read("ds_read_b128", A_AD, 4, A_FLG, off=F_OF)
    a.valu("v_add_f32", V(A_T0), V(A_L0), V(A_L1))
    a.valu("v_mov_b32", V(A_T1), V(A_T0))
    a.permlane32_swap(A_T0, A_T1)
    a.valu("v_add_f32", V(A_T0), V(A_T0), V(A_T1))
    a.valu("v_rcp_f32", V(A_T0), V(A_T0))
    for dt in range(4):
        for kk in range(2):
            b = A_O + 16 * dt + 8 * kk
            d = A_S + 8 * dt + 4 * kk
            for i in range(8):
                a.valu("v_mul_f32", V(b + i), V(b + i), V(A_T0))
            for i in range(0, 8, 2):
                a.valu("v_cvt_pk_bf16_f32", V(d + i // 2), V(b + i), V(b + i + 1))
    stamp(a, 3)
    a.waitcnt(lgkm=0)
    lds_check(a, A_FLG, F_OF, A_AD, SA_T, SA_U, SA_SP, tail)
    stamp(a, 1)
    for f in range(8):
        a.ds_write("ds_write_b128", A_VO, A_S + 4 * f, 4, off=f * 2048)
    a.waitcnt(lgkm=0)
    a.valu("v_add_u32", V(A_T2), F_OW - F_CD, V(A_FW))
    lds_post(a, A_T2, A_ONE)
    a.salu("s_add_u32", S(SA_U), S(SA_U), 1)
    a.scmp("s_cmp_lt_u32", S(SA_U), 4)
    a.branch("s_cbranch_scc1", "La_unit")
    a.waitcnt(lgkm=0)
    stamp(a, 5)
    diag_dump(a, A_T2)
    a.branch("s_branch", "Lm_done")
    for t in tail:
        t(a)


P_FW = 0
P_L16 = 1
P_VDK = 2
P_VDV = 6
P_VDQ = 7
P_ACC = 8
P_OF = 152
P_WF = 168
P_NW = 19
P_FLG = 244
P_CNT = 245
P_OCNT = 246
P_OA = 247
P_F = 248
P_T0 = 248
P_T1 = 249
P_T2 = 250
P_T3 = 251
SP_K = 8
SP_V = 12
SP_Q = 16
SP_X = 20
SP_WO = 28
SP_OUT = 32
SP_YU = 26
SP_W = 27
SP_A = 62
SP_B = 63
SP_T = 64
SP_T2 = 65
SP_PEND = 66
SP_SPIN = 67
SP_I = 68
SP_TN = 69
SP_SH = 70
SP_KN = 71
SP_VN = 72
SP_QN = 73
SP_WS = 74
SP_WLIM = 75
SP_PI = 76
SP_YT = 77
SP_CD = 78
YPRIO = int(os.environ.get("YPRIO", "3"))
INFL = int(os.environ.get("INFL", "3"))
PHI = int(os.environ.get("PHI", "4"))


def p_issue_tile(a):
    lk, lv, ld = uid("Ltk"), uid("Ltv"), uid("Ltd")
    a.salu("s_mov_b32", "m0", S(SP_WS))
    a.scmp("s_cmp_ge_u32", S(SP_PI), 2)
    a.branch("s_cbranch_scc1", lk)
    for i in range(4):
        a.dma(P_VDQ, SP_Q, S(SP_QN), off=1024 * i, flags=QLF)
    a.salu("s_add_u32", S(SP_QN), S(SP_QN), SLOT)
    a.branch("s_branch", ld)
    a.label(lk)
    a.op("s_bitcmp1_b32 %s, 1" % S(SP_PI), "salu", [], [S(SP_PI)])
    a.branch("s_cbranch_scc0", lv)
    for i in range(4):
        a.dma(P_VDK + i, SP_K, S(SP_KN), off=1024 * i, flags=KVF)
    a.salu("s_add_u32", S(SP_KN), S(SP_KN), SLOT)
    a.branch("s_branch", ld)
    a.label(lv)
    for i in range(4):
        a.dma(P_VDV, SP_V, S(SP_VN), off=1024 * i, flags=KVF)
    a.salu("s_add_u32", S(SP_VN), S(SP_VN), SLOT)
    a.label(ld)
    a.salu("s_add_u32", S(SP_WS), S(SP_WS), SLOT)
    a.scmp("s_cmp_ge_u32", S(SP_WS), S(SP_WLIM))
    a.salu("s_cselect_b32", S(SP_T), NSLOT * SLOT, 0)
    a.salu("s_sub_u32", S(SP_WS), S(SP_WS), S(SP_T))
    a.salu("s_add_u32", S(SP_PI), S(SP_PI), 1)
    a.scmp("s_cmp_eq_u32", S(SP_PI), 18)
    a.salu("s_cselect_b32", S(SP_PI), 0, S(SP_PI))
    a.salu("s_add_u32", S(SP_TN), S(SP_TN), 1)


def p_retire_one(a):
    ld = uid("Lrd")
    labs = [uid("Lr") for _ in range(INFL)]
    for k in range(INFL, 1, -1):
        a.scmp("s_cmp_lg_u32", S(SP_PEND), k)
        a.branch("s_cbranch_scc1", labs[k - 1])
        a.waitcnt(vm=4 * (k - 1))
        a.branch("s_branch", ld)
        a.label(labs[k - 1])
    a.waitcnt(vm=0)
    a.label(ld)
    lds_post(a, P_FW, P_CNT)
    a.salu("s_sub_u32", S(SP_PEND), S(SP_PEND), 1)


def gen_y(a):
    vq = Queue(a, "vm")
    lq = Queue(a, "lgkm")
    a.salu("s_mul_i32", S(SP_A), S(SP_YU), 81920)

    def wload(i):
        a.buf_load(P_WF + 4 * (i % P_NW), 4, P_L16, SP_WO, S(SP_A), off=(i & 3) * 1024, flags=WOF)
        vq.push(("w", i))
        if (i & 3) == 3:
            a.salu("s_add_u32", S(SP_A), S(SP_A), 4096)

    def oread(ks):
        for qh in range(2):
            a.ds_read("ds_read_b128", P_OF + 8 * (ks & 1) + 4 * qh, 4, P_OA, off=ks * 2048 + qh * 1024)
            lq.push(("o", ks, qh))

    for i in range(P_NW):
        wload(i)
    oread(0)
    for ks in range(16):
        if ks < 15:
            oread(ks + 1)
        lq.wait(("o", ks, 1))
        if ks == 15:
            a.valu("v_add_u32", V(P_T0), F_OF - F_CL, V(P_FW))
            lds_post(a, P_T0, P_OCNT)
        o0 = P_OF + 8 * (ks & 1)
        o1 = o0 + 4
        for ct in range(5):
            i = 5 * ks + ct
            vq.wait(("w", i))
            w = P_WF + 4 * (i % P_NW)
            if ct < 4:
                a.mfma32(P_ACC + 32 * ct, w, o0)
                a.mfma32(P_ACC + 32 * ct + 16, w, o1)
            else:
                l1, l2 = uid("Lsh"), uid("Lsh")
                a.scmp("s_cmp_lg_u32", S(SP_SH), 0)
                a.lines.append("    s_cbranch_scc1 %s" % l1)
                a.mfma32(P_ACC + 128, w, o0)
                a.lines.append("    s_branch %s" % l2)
                a.lines.append(l1 + ":")
                a.mfma32(P_ACC + 128, w, o1)
                a.lines.append(l2 + ":")
            if i + P_NW < 80:
                wload(i + P_NW)


def gen_P(a):
    a.label("Lp_start")
    diag_init(a)
    a.misc("s_setprio 3")
    a.salu("s_sub_u32", S(SP_W), "s3", 4)
    a.valu("v_lshlrev_b32", V(P_L16), 4, "v0")
    a.salu("s_lshl_b32", "s59", "s6", 4)
    a.salu("s_lshl_b32", "s60", "s5", 2)
    a.salu("s_add_u32", "s59", "s59", "s60")
    a.salu("s_lshl_b32", "s59", "s59", 17)
    a.salu("s_add_u32", "s38", "s38", "s59")
    a.salu("s_addc_u32", "s39", "s39", 0)
    a.salu("s_add_u32", "s40", "s40", "s59")
    a.salu("s_addc_u32", "s41", "s41", 0)
    a.srd(SP_K, 38, 39, 4 * 131072)
    a.srd(SP_V, 40, 41, 4 * 131072)
    a.valu("v_lshrrev_b32", V(P_T2), 4, "v0")
    a.valu("v_and_b32", V(P_T0), 15, "v0")
    a.salu("s_lshl_b32", "s59", S(SP_W), 12)
    a.valu("v_lshl_add_u32", V(P_T1), V(P_T2), 8, "s59")
    for i in range(4):
        a.valu("v_add_u32", V(P_T3), 4 * i, V(P_T2))
        a.valu("v_xor_b32", V(P_T3), V(P_T3), V(P_T0))
        a.valu("v_lshl_add_u32", V(P_VDK + i), V(P_T3), 4, V(P_T1))
    a.valu("v_lshlrev_b32", V(P_T3), 2, V(P_T2))
    a.valu("v_xor_b32", V(P_T3), V(P_T3), V(P_T0))
    a.valu("v_lshl_add_u32", V(P_VDV), V(P_T3), 4, V(P_T1))
    a.valu("v_add_u32", V(P_VDQ), "s59", V(P_L16))
    a.valu("v_mov_b32", V(P_FLG), FLG)
    a.valu("v_mov_b32", V(P_CNT), 0)
    a.valu("v_mov_b32", V(P_OCNT), 0)
    a.valu("v_add_u32", V(P_OA), OBUF, V(P_L16))
    a.salu("s_lshl_b32", "s60", S(SP_W), 2)
    a.salu("s_add_u32", "s60", "s60", FLG + F_CL)
    a.valu("v_mov_b32", V(P_FW), "s60")
    for r in (SP_KN, SP_VN, SP_QN, SP_PI, SP_TN, SP_YU, SP_PEND, SP_SPIN):
        a.salu("s_mov_b32", S(r), 0)
    a.salu("s_mov_b32", S(SP_WS), "s59")
    a.salu("s_add_u32", S(SP_WLIM), S(SP_WS), NSLOT * SLOT)
    for t in range(INFL):
        p_issue_tile(a)
    a.salu("s_mov_b32", S(SP_PEND), INFL)
    a.salu("s_lshl_b32", "s59", "s4", 2)
    a.salu("s_add_u32", "s59", "s59", S(SP_W))
    a.salu("s_lshl_b32", "s59", "s59", 4)
    a.salu("s_lshl_b32", "s60", "s5", 2)
    a.salu("s_add_u32", "s59", "s59", "s60")
    a.salu("s_mul_i32", "s59", "s59", 81920)
    a.salu("s_add_u32", "s59", "s59", WOP_OFF)
    a.salu("s_add_u32", "s60", "s56", "s59")
    a.salu("s_addc_u32", "s61", "s57", 0)
    a.srd(SP_WO, 60, 61, 4 * 81920)
    a.salu("s_mul_i32", "s59", "s7", 16 * 18432)
    a.salu("s_add_u32", "s59", "s59", O_OFF)
    a.salu("s_add_u32", "s60", "s56", "s59")
    a.salu("s_addc_u32", "s61", "s57", 0)
    a.srd(SP_X, 60, 61, 16 * 18432)
    a.srd(SP_OUT, 52, 53, 32 * 64 * 2304)
    a.salu("s_and_b32", S(SP_SH), S(SP_W), 1)
    a.salu("s_and_b32", S(SP_YT), "s6", 3)
    a.salu("s_mul_i32", S(SP_YT), S(SP_YT), PHI)
    a.salu("s_add_u32", S(SP_YT), S(SP_YT), 18)
    for i in range(144):
        a.valu("v_mov_b32", V(P_ACC + i), 0)

    a.label("Lp_loop")
    stamp(a, 5)
    a.scmp("s_cmp_lt_u32", S(SP_PEND), INFL)
    a.branch("s_cbranch_scc1", "Lp_chk")
    p_retire_one(a)
    stamp(a, 1)
    a.label("Lp_chk")
    a.ds_read("ds_read_b128", P_F, 4, P_FLG, off=F_CD)
    a.ds_read("ds_read_b128", P_F + 4, 4, P_FLG, off=F_OW)
    a.waitcnt(lgkm=0)
    lds_min4(a, P_F, SP_CD)
    lds_min4(a, P_F + 4, SP_T2)
    a.scmp("s_cmp_le_u32", S(SP_T2), S(SP_YU))
    a.branch("s_cbranch_scc1", "Lp_tile")
    a.salu("s_min_u32", S(SP_T), S(SP_YT), NTILE)
    a.scmp("s_cmp_ge_u32", S(SP_CD), S(SP_T))
    a.branch("s_cbranch_scc1", "Lp_y")
    a.label("Lp_tile")
    a.scmp("s_cmp_ge_u32", S(SP_TN), NTILE)
    a.branch("s_cbranch_scc1", "Lp_nospace")
    a.salu("s_add_u32", S(SP_T), S(SP_CD), NSLOT)
    a.scmp("s_cmp_ge_u32", S(SP_TN), S(SP_T))
    a.branch("s_cbranch_scc1", "Lp_nospace")
    p_issue_tile(a)
    a.salu("s_add_u32", S(SP_PEND), S(SP_PEND), 1)
    stamp(a, 0)
    a.branch("s_branch", "Lp_loop")
    a.label("Lp_nospace")
    a.scmp("s_cmp_eq_u32", S(SP_PEND), 0)
    a.branch("s_cbranch_scc1", "Lp_nap")
    p_retire_one(a)
    stamp(a, 1)
    a.branch("s_branch", "Lp_loop")
    a.label("Lp_nap")
    a.salu("s_add_u32", S(SP_SPIN), S(SP_SPIN), 1)
    a.scmp("s_cmp_ge_u32", S(SP_SPIN), 4 * SPIN_CAP)
    a.branch("s_cbranch_scc1", "Lp_fin")
    a.misc("s_sleep 1")
    stamp(a, 2)
    a.branch("s_branch", "Lp_loop")

    a.label("Lp_y")
    a.scmp("s_cmp_eq_u32", S(SP_PEND), 0)
    a.branch("s_cbranch_scc1", "Lp_y2")
    p_retire_one(a)
    a.branch("s_branch", "Lp_y")
    a.label("Lp_y2")
    stamp(a, 1)
    if YPRIO != 3:
        a.misc("s_setprio %d" % YPRIO)
    gen_y(a)
    if YPRIO != 3:
        a.misc("s_setprio 3")
    stamp(a, 4)
    a.salu("s_add_u32", S(SP_YU), S(SP_YU), 1)
    a.salu("s_add_u32", S(SP_YT), S(SP_YT), 18)
    a.scmp("s_cmp_lt_u32", S(SP_YU), 4)
    a.branch("s_cbranch_scc1", "Lp_loop")
    a.label("Lp_fin")

    a.scmp("s_cmp_eq_u32", S(SP_W), "s5")
    a.branch("s_cbranch_scc1", "Lp_own")
    a.salu("s_lshl_b32", S(SP_T), S(SP_W), 2)
    a.salu("s_add_u32", S(SP_T), S(SP_T), "s5")
    a.salu("s_mul_i32", S(SP_A), S(SP_T), 18432)
    for x in range(18):
        r = P_ACC + 8 * x
        for i in range(4):
            a.valu("v_cvt_pk_bf16_f32", V(r + i), V(r + 2 * i), V(r + 2 * i + 1))
        a.buf_store(r, 4, P_L16, SP_X, S(SP_A), off=(x & 3) * 1024, flags="sc1")
        if (x & 3) == 3:
            a.salu("s_add_u32", S(SP_A), S(SP_A), 4096)
    a.waitcnt(vm=0)
    a.branch("s_branch", "Lp_sent")
    a.label("Lp_own")
    for x in range(36):
        a.ds_write("ds_write_b128", P_L16, P_ACC + 4 * x, 4, off=x * 1024)
    a.waitcnt(lgkm=0)
    a.label("Lp_sent")
    a.valu("v_mov_b32", V(P_T1), 1)
    a.salu("s_mov_b64", "exec", 1)
    a.op("ds_add_rtn_u32 %s, %s, %s offset:%d" % (V(P_T0), V(P_FLG), V(P_T1), F_XC), "ds", [V(P_T0)], [V(P_FLG), V(P_T1)])
    a.salu("s_mov_b64", "exec", -1)
    a.waitcnt(lgkm=0)
    a.readfirstlane(SP_T, P_T0)
    a.valu("v_mov_b32", V(P_T2), 0)
    a.salu("s_mov_b32", S(SP_PEND), S(SP_T))
    a.scmp("s_cmp_lg_u32", S(SP_T), 3)
    a.branch("s_cbranch_scc1", "Lp_xpoll")
    a.salu("s_mov_b64", "exec", 1)
    a.op("global_atomic_add %s, %s, s[24:25]" % (V(P_T2), V(P_T1)), "vmem", [], [V(P_T2), V(P_T1), "s24", "s25"])
    a.salu("s_mov_b64", "exec", -1)
    a.label("Lp_xpoll")
    stamp(a, 6)
    a.valu("v_bfe_u32", V(P_T3), V(P_L16), 4, 5)
    a.valu("v_mul_u32_u24", V(P_T3), 2304, V(P_T3))
    a.valu("v_lshrrev_b32", V(P_T1), 9, V(P_L16))
    a.valu("v_lshl_add_u32", V(P_T3), V(P_T1), 4, V(P_T3))
    a.salu("s_mul_i32", S(SP_KN), "s6", 147456)
    a.salu("s_mul_i32", S(SP_B), "s4", 1152)
    a.salu("s_add_u32", S(SP_KN), S(SP_KN), S(SP_B))
    a.salu("s_add_u32", S(SP_T), "s5", 1)
    a.salu("s_lshr_b32", S(SP_T), S(SP_T), 1)
    a.salu("s_lshl_b32", S(SP_T2), "s5", 2)
    a.salu("s_add_u32", S(SP_T), S(SP_T), S(SP_T2))
    a.salu("s_lshl_b32", S(SP_VN), S(SP_T), 6)
    a.salu("s_lshr_b32", S(SP_T), "s5", 1)
    a.salu("s_mul_i32", S(SP_T), S(SP_T), 9 * 64)
    a.salu("s_add_u32", S(SP_T), S(SP_T), 256)
    a.salu("s_and_b32", S(SP_T2), "s5", 1)
    a.salu("s_mul_i32", S(SP_T2), S(SP_T2), 32 * 2304)
    a.salu("s_add_u32", S(SP_QN), S(SP_T), S(SP_T2))
    a.salu("s_mov_b32", S(SP_SPIN), 0)
    a.scmp("s_cmp_lg_u32", S(SP_PEND), 3)
    a.branch("s_cbranch_scc1", "Lp_xl")
    a.label("Lp_xp")
    a.op("global_load_dword %s, %s, s[24:25] sc1" % (V(P_T0), V(P_T2)), "vmem", [V(P_T0)], [V(P_T2), "s24", "s25"])
    a.waitcnt(vm=0)
    a.readfirstlane(SP_T, P_T0)
    a.scmp("s_cmp_ge_u32", S(SP_T), 4)
    a.branch("s_cbranch_scc1", "Lp_xok")
    a.misc("s_sleep 4")
    a.salu("s_add_u32", S(SP_SPIN), S(SP_SPIN), 1)
    a.scmp("s_cmp_lt_u32", S(SP_SPIN), SPIN_CAP)
    a.branch("s_cbranch_scc1", "Lp_xp")
    a.label("Lp_xok")
    a.valu("v_mov_b32", V(P_T0), 1)
    a.salu("s_mov_b64", "exec", 1)
    a.ds_write("ds_write_b32", P_FLG, P_T0, 1, off=F_XC + 4)
    a.salu("s_mov_b64", "exec", -1)
    a.branch("s_branch", "Lp_xgo")
    a.label("Lp_xl")
    a.misc("s_sleep 1")
    a.ds_read("ds_read_b32", P_T0, 1, P_FLG, off=F_XC + 4)
    a.waitcnt(lgkm=0)
    a.readfirstlane(SP_T, P_T0)
    a.scmp("s_cmp_lg_u32", S(SP_T), 0)
    a.branch("s_cbranch_scc1", "Lp_xgo")
    a.salu("s_add_u32", S(SP_SPIN), S(SP_SPIN), 1)
    a.scmp("s_cmp_lt_u32", S(SP_SPIN), 8 * SPIN_CAP)
    a.branch("s_cbranch_scc1", "Lp_xl")
    a.label("Lp_xgo")
    stamp(a, 7)
    a.salu("s_mul_i32", S(SP_A), "s5", 4 * 18432)
    a.salu("s_lshl_b32", S(SP_T), S(SP_W), 10)
    a.salu("s_add_u32", S(SP_A), S(SP_A), S(SP_T))
    for src in range(4):
        a.scmp("s_cmp_eq_u32", "s5", src)
        a.salu("s_cselect_b32", S(SP_B), 0x10000000, S(SP_A))
        for k in range(5):
            a.buf_load(P_ACC + 20 * src + 4 * k, 4, P_L16, SP_X, S(SP_B), flags="sc1")
            a.salu("s_add_u32", S(SP_B), S(SP_B), 4096)
        a.salu("s_add_u32", S(SP_A), S(SP_A), 18432)
    a.salu("s_lshl_b32", S(SP_T), S(SP_W), 11)
    a.valu("v_add_u32", V(P_T0), S(SP_T), V(P_L16))
    OWN = P_ACC + 80
    for k in range(5):
        for hq in range(2):
            a.ds_read("ds_read_b128", OWN + 8 * k + 4 * hq, 4, P_T0, off=k * 8192 + hq * 1024)
    a.waitcnt(vm=0, lgkm=0)
    for k in range(5):
        for src in range(4):
            for i in range(4):
                pk = P_ACC + 20 * src + 4 * k + i
                a.valu("v_lshlrev_b32", V(P_T0), 16, V(pk))
                a.valu("v_and_b32", V(P_T1), 0xFFFF0000, V(pk))
                a.valu("v_add_f32", V(OWN + 8 * k + 2 * i), V(OWN + 8 * k + 2 * i), V(P_T0))
                a.valu("v_add_f32", V(OWN + 8 * k + 2 * i + 1), V(OWN + 8 * k + 2 * i + 1), V(P_T1))
        r = OWN + 8 * k
        for i in range(4):
            a.valu("v_cvt_pk_bf16_f32", V(r + i), V(r + 2 * i), V(r + 2 * i + 1))
        a.salu("s_add_u32", S(SP_T), S(SP_W), 4 * k)
        a.salu("s_lshr_b32", S(SP_T2), S(SP_T), 2)
        a.salu("s_lshl_b32", S(SP_T2), S(SP_T2), 6)
        a.salu("s_add_u32", S(SP_T2), S(SP_T2), S(SP_VN))
        a.salu("s_bfe_u32", S(SP_I), S(SP_T), 0x10001)
        a.salu("s_mul_i32", S(SP_I), S(SP_I), 32 * 2304)
        a.salu("s_add_u32", S(SP_T2), S(SP_T2), S(SP_I))
        a.scmp("s_cmp_ge_u32", S(SP_T), 16)
        a.salu("s_cselect_b32", S(SP_T2), S(SP_QN), S(SP_T2))
        a.salu("s_and_b32", S(SP_I), S(SP_T), 1)
        a.salu("s_lshl_b32", S(SP_I), S(SP_I), 5)
        a.salu("s_add_u32", S(SP_T2), S(SP_T2), S(SP_I))
        a.salu("s_add_u32", S(SP_T2), S(SP_T2), S(SP_KN))
        a.scmp("s_cmp_ge_u32", S(SP_T), 18)
        a.salu("s_cselect_b32", S(SP_T2), 0x10000000, S(SP_T2))
        a.buf_store(r, 4, P_T3, SP_OUT, S(SP_T2))
    if DIAG:
        a.waitcnt(vm=0)
        stamp(a, 3)
        diag_dump(a, P_T0)
    a.branch("s_branch", "Lm_done")


def main():
    out = sys.argv[1] if len(sys.argv) > 1 else "cdna_kernels/%s.s" % NAME
    a = Asm()
    a.raw(HEADER)
    gen_qproj_kernel(a)
    a.hist = []
    gen_main(a)
    a.raw('.section .rodata,"a"\n.p2align 6')
    a.raw(kd("qproj_kernel", 256, 102 if DIAG else 80, 256))
    a.raw(".p2align 6")
    a.raw(kd(NAME + "_kernel", 256, 102 if DIAG else 80, 256))
    open(out, "w").write(a.text())
    print("wrote %s: %d instructions, %d nop states" % (out, a.n_ins, a.nops_inserted))


if __name__ == "__main__":
    main()
```

```python
import math
import struct
import sys
import os

sys.path.insert(0, os.path.dirname(os.path.abspath(__file__)))
from asmlib import Asm, V, S, vr, sr

NAME = "concat_heads__gqa_block_cached__gqa_block_cached__near_ridge"

WOP_OFF = 0
WOP_SZ = 2 * 4 * 16 * 16 * 5 * 1024
Q_OFF = WOP_OFF + WOP_SZ
Q_SZ = 256 * 4 * 32768
O_OFF = Q_OFF + Q_SZ
O_SZ = 64 * 16 * 18432
CNT_OFF = O_OFF + O_SZ
WS_USED = CNT_OFF + 64 * 128

SLOT = 16384
NSLOT = int(os.environ.get("NSLOT", "7"))
OBUF = NSLOT * SLOT
FLG = OBUF + 32768
LDS_MAIN = FLG + 128
F_CD, F_CL, F_OW, F_OF, F_XC, F_QGO, F_SC = 0, 16, 32, 48, 64, 72, 76
LDS_Q = 3 * 49152

SCALE = (128 ** -0.5) * math.log2(math.e)
THRESH = 8.0
SPIN_CAP = 300000

DIAG = bool(int(os.environ.get("DIAG", "0")))
EXP = os.environ.get("EXP", "")
DIAG_OFF = 128 << 20


def f32bits(x):
    return struct.unpack("<I", struct.pack("<f", x))[0]


def stamp(a, acc=None):
    if not DIAG:
        return
    a.op("s_memtime s[80:81]", "smem", ["s80", "s81"], [])
    a.waitcnt(lgkm=0)
    if acc is not None:
        a.salu("s_sub_u32", "s83", "s80", "s82")
        a.salu("s_add_u32", S(84 + acc), S(84 + acc), "s83")
    a.salu("s_mov_b32", "s82", "s80")


def diag_init(a):
    if not DIAG:
        return
    for i in range(8):
        a.salu("s_mov_b32", S(84 + i), 0)
    stamp(a)
    a.salu("s_mov_b32", "s92", "s80")
    a.op("s_memrealtime s[96:97]", "smem", ["s96", "s97"], [])
    a.waitcnt(lgkm=0)


def diag_dump(a, tmpv, wslo=56, extra=0):
    if not DIAG:
        return
    stamp(a)
    a.salu("s_sub_u32", "s93", "s80", "s92")
    a.op("s_memrealtime s[98:99]", "smem", ["s98", "s99"], [])
    a.waitcnt(lgkm=0)
    a.salu("s_sub_u32", "s92", "s98", "s96")
    a.salu("s_lshl_b32", "s83", "s2", 3)
    a.salu("s_add_u32", "s83", "s83", "s3")
    a.salu("s_lshl_b32", "s83", "s83", 6)
    a.salu("s_add_u32", "s83", "s83", DIAG_OFF + extra)
    a.salu("s_add_u32", "s94", S(wslo), "s83")
    a.salu("s_addc_u32", "s95", S(wslo + 1), 0)
    a.valu("v_mov_b32", V(tmpv), 0)
    a.salu("s_mov_b64", "exec", 1)
    for i in range(10):
        a.valu("v_mov_b32", V(tmpv + 1), S(84 + i))
        a.op("global_store_dword %s, %s, s[94:95] offset:%d" % (V(tmpv), V(tmpv + 1), 4 * i), "vmem", [],
             [V(tmpv), V(tmpv + 1), "s94", "s95"])
        a.waitcnt(vm=0)
    a.salu("s_mov_b64", "exec", -1)


HEADER = """; Kernarg layout for this problem (104 bytes, ptrs only, base s[0:1]):
;   offset   0: d_in[0] A_x  shape=(32, 64, 576) dtype=bfloat16
;   offset   8: d_in[1] A_k_cache  shape=(32, 16, 512, 128) dtype=bfloat16
;   offset  16: d_in[2] A_v_cache  shape=(32, 16, 512, 128) dtype=bfloat16
;   offset  24: d_in[3] A_wq  shape=(576, 4096) dtype=bfloat16
;   offset  32: d_in[4] A_wo  shape=(4096, 576) dtype=bfloat16
;   offset  40: d_in[5] B_x  shape=(32, 64, 576) dtype=bfloat16
;   offset  48: d_in[6] B_k_cache  shape=(32, 16, 512, 128) dtype=bfloat16
;   offset  56: d_in[7] B_v_cache  shape=(32, 16, 512, 128) dtype=bfloat16
;   offset  64: d_in[8] B_wq  shape=(576, 4096) dtype=bfloat16
;   offset  72: d_in[9] B_wo  shape=(4096, 576) dtype=bfloat16
;   offset  80: d_out     shape=(32, 64, 1152) dtype=bfloat16 (2 bytes/elem)
;   offset  88: d_debug   256 bytes
;   offset  96: d_ws      292028416 bytes workspace
; Generated by gen/gen13.py (hand-written generator).
; @launch grid=(256,1,1) block=(512,1,1) lds=%d
.amdgcn_target "amdgcn-amd-amdhsa--gfx950"
.text
""" % (LDS_MAIN,)


def kd(name, vgpr, sgpr, accum):
    return """.amdhsa_kernel %s
  .amdhsa_next_free_vgpr %d
  .amdhsa_next_free_sgpr %d
  .amdhsa_accum_offset %d
  .amdhsa_group_segment_fixed_size 0
  .amdhsa_kernarg_size 104
  .amdhsa_user_sgpr_count 2
  .amdhsa_user_sgpr_kernarg_segment_ptr 1
  .amdhsa_system_sgpr_workgroup_id_x 1
.end_amdhsa_kernel
""" % (name, vgpr, sgpr, accum)


G_VX = 2
G_VW = 6
G_BC = 8
G_AC = 9
G_BA = 10
G_AA = 14
G_T0 = 16
G_T1 = 17
G_T2 = 18
G_T3 = 19
G_L16 = 20
G_CB = 23
G_WO = 24
G_AF = 48
G_BF = 64
G_ACC = 96
GLF = os.environ.get("GLF", "nt")
QSF = "sc1"
QLF = "sc1"
ROT = int(os.environ.get("ROT", "0"))
GBUF = 49152
WARM = bool(int(os.environ.get("WARM", "0")))


def gen_qproj_kernel(a):
    K = NAME + "_kernel"
    a.raw(".globl %s\n.p2align 8\n.type %s,@function\n%s:" % (K, K, K))
    a.scmp("s_cmp_ge_u32", "s2", 256)
    a.branch("s_cbranch_scc1", "Lm_done")
    diag_init(a)
    a.s_load(36, 8, 0, 0)
    a.s_load(44, 2, 0, 32)
    a.s_load(48, 8, 0, 40)
    a.s_load(56, 2, 0, 72)
    a.s_load(58, 2, 0, 96)
    a.valu("v_lshrrev_b32", "v1", 6, "v0")
    a.readfirstlane(3, 1)
    a.valu("v_lshlrev_b32", V(G_T3), 4, "v0")
    a.valu("v_and_b32", "v0", 63, "v0")
    a.valu("v_lshlrev_b32", V(G_L16), 4, "v0")
    a.salu("s_bfe_u32", "s4", "s2", 0x10002)
    a.salu("s_and_b32", "s5", "s2", 3)
    a.salu("s_bfe_u32", "s6", "s2", 0x20003)
    a.salu("s_lshr_b32", "s7", "s2", 5)
    a.salu("s_lshl_b32", "s26", "s5", 2)
    a.salu("s_add_u32", "s26", "s26", "s6")
    a.valu("v_lshrrev_b32", V(G_T0), 3, "v0")
    a.salu("s_lshl_b32", "s27", "s3", 5)
    a.valu("v_add_u32", V(G_T0), "s27", V(G_T0))
    a.valu("v_mul_u32_u24", V(G_T0), 1152, V(G_T0))
    a.valu("v_and_b32", V(G_T1), 7, "v0")
    a.valu("v_lshrrev_b32", V(G_T2), 4, "v0")
    a.valu("v_xor_b32", V(G_T1), V(G_T1), V(G_T2))
    a.valu("v_lshl_add_u32", V(G_VX), V(G_T1), 4, V(G_T0))
    a.valu("v_add_u32", V(G_VX + 2), 2 * (8 * 1152 - 1024), V(G_VX))
    a.valu("v_xor_b32", V(G_T1), 4, V(G_T1))
    a.valu("v_lshl_add_u32", V(G_VX + 1), V(G_T1), 4, V(G_T0))
    a.valu("v_add_u32", V(G_VX + 1), 8 * 1152 - 1024, V(G_VX + 1))
    a.valu("v_add_u32", V(G_VX + 3), 2 * (8 * 1152 - 1024), V(G_VX + 1))
    a.salu("s_lshl_b32", "s27", "s3", 3)
    a.valu("v_add_u32", V(G_T0), "s27", V(G_T2))
    a.valu("v_lshlrev_b32", V(G_T0), 13, V(G_T0))
    a.valu("v_and_b32", V(G_T1), 15, "v0")
    a.valu("v_lshlrev_b32", V(G_T2), 2, V(G_T2))
    a.valu("v_xor_b32", V(G_T1), V(G_T1), V(G_T2))
    a.valu("v_lshl_add_u32", V(G_VW), V(G_T1), 4, V(G_T0))
    a.valu("v_add_u32", V(G_VW + 1), 4 * 8192 - 1024, V(G_VW))
    a.salu("s_lshl_b32", "s68", "s6", 1)
    a.salu("s_add_u32", "s68", "s68", "s7")
    a.salu("s_mul_i32", "s68", "s68", ROT)
    a.scmp("s_cmp_ge_u32", "s68", 9)
    a.salu("s_cselect_b32", "s28", 9, 0)
    a.salu("s_sub_u32", "s68", "s68", "s28")
    a.salu("s_lshl_b32", "s28", "s68", 7)
    a.salu("s_lshl_b32", "s29", "s68", 19)
    a.salu("s_lshl_b32", "s62", "s26", 9)
    a.salu("s_add_u32", "s29", "s29", "s62")
    a.salu("s_lshl_b32", "s30", "s3", 12)
    a.salu("s_lshl_b32", "s31", "s3", 11)
    a.salu("s_add_u32", "s31", "s31", 32768)
    a.salu("s_mov_b32", "s34", 0)
    a.salu("s_mov_b32", "s63", 0)
    a.waitcnt(lgkm=0)
    a.scmp("s_cmp_eq_u32", "s4", 1)
    for i in range(10):
        a.salu("s_cselect_b32", S(36 + i), S(48 + i), S(36 + i))
    a.salu("s_mul_i32", "s27", "s7", 256 * 1152)
    a.salu("s_add_u32", "s36", "s36", "s27")
    a.salu("s_addc_u32", "s37", "s37", 0)
    a.srd(8, 36, 37, 256 * 1152)
    a.srd(12, 42, 43, 576 * 8192)

    def dma_ops():
        ops = []

        def m0x():
            a.salu("s_add_u32", "s62", "s30", "s34")
            a.salu("s_mov_b32", "m0", "s62")
            a.dma(G_VX, 8, "s28", flags=GLF)
        ops.append(m0x)
        for ii in range(1, 4):
            ops.append(lambda ii=ii: a.dma(G_VX + ii, 8, "s28", off=1024 * ii, flags=GLF))

        def m0w():
            a.salu("s_add_u32", "s62", "s31", "s34")
            a.salu("s_mov_b32", "m0", "s62")
            a.dma(G_VW, 12, "s29", flags=GLF)
        ops.append(m0w)

        def last():
            a.dma(G_VW + 1, 12, "s29", off=1024, flags=GLF)
            a.salu("s_add_u32", "s28", "s28", 128)
            a.salu("s_add_u32", "s29", "s29", 64 * 8192)
            a.salu("s_add_u32", "s34", "s34", GBUF)
            a.scmp("s_cmp_eq_u32", "s34", 3 * GBUF)
            a.salu("s_cselect_b32", "s34", 0, "s34")
            a.salu("s_add_u32", "s63", "s63", 1)
            a.salu("s_add_u32", "s68", "s68", 1)
            a.scmp("s_cmp_eq_u32", "s68", 9)
            a.salu("s_cselect_b32", "s68", 0, "s68")
            a.salu("s_cselect_b32", "s28", 0, "s28")
            a.salu("s_cselect_b32", "s62", 576 * 8192, 0)
            a.salu("s_sub_u32", "s29", "s29", "s62")
            a.scmp("s_cmp_eq_u32", "s63", 9)
            a.salu("s_cselect_b32", "s62", 256, 0)
            a.salu("s_add_u32", "s29", "s29", "s62")
            a.scmp("s_cmp_ge_u32", "s63", 18)
            a.salu("s_cselect_b32", "s28", 0x10000000, "s28")
            a.salu("s_cselect_b32", "s29", 0x10000000, "s29")
            a.salu("s_cselect_b32", "s34", 0x28000, "s34")
        ops.append(last)
        return ops

    for _ in range(2):
        for f in dma_ops():
            f()
    if WARM:
        a.salu("s_mul_i32", "s60", "s7", 256 * 1152)
        a.salu("s_sub_u32", "s60", "s36", "s60")
        a.salu("s_subb_u32", "s61", "s37", 0)
        a.srd(16, 60, 61, 2048 * 1152)
        a.salu("s_mov_b32", "m0", 0x28000)
        a.salu("s_lshr_b32", "s33", "s2", 3)
        for i in range(5):
            a.salu("s_add_u32", "s60", "s3", 8 * i)
            a.salu("s_lshr_b32", "s61", "s60", 1)
            a.salu("s_mul_i32", "s62", "s33", 18)
            a.salu("s_add_u32", "s61", "s61", "s62")
            a.salu("s_lshl_b32", "s61", "s61", 13)
            a.salu("s_and_b32", "s62", "s60", 1)
            a.salu("s_lshl_b32", "s62", "s62", 10)
            a.salu("s_add_u32", "s61", "s61", "s62")
            a.salu("s_lshl_b32", "s62", "s5", 11)
            a.salu("s_add_u32", "s61", "s61", "s62")
            a.scmp("s_cmp_ge_u32", "s60", 36)
            a.salu("s_cselect_b32", "s61", 0x10000000, "s61")
            a.buf_load(192 + 4 * i, 4, G_L16, 12, "s61", flags=GLF)
        a.salu("s_mul_i32", "s60", "s33", 73728)
        a.salu("s_mul_i32", "s61", "s3", 9216)
        a.salu("s_add_u32", "s60", "s60", "s61")
        for i in range(9):
            a.buf_load(212 + 4 * i, 4, G_L16, 16, "s60", off=(i & 3) * 1024, flags=GLF)
            if (i & 3) == 3:
                a.salu("s_add_u32", "s60", "s60", 4096)
    a.salu("s_and_b32", "s32", "s2", 3)
    a.salu("s_lshl_b32", "s32", "s32", 5)
    a.salu("s_lshr_b32", "s33", "s2", 3)
    a.salu("s_add_u32", "s32", "s32", "s33")
    a.salu("s_mul_i32", "s33", "s32", 36864)
    a.salu("s_add_u32", "s44", "s44", "s33")
    a.salu("s_addc_u32", "s45", "s45", 0)
    a.srd(16, 44, 45, 36864)
    a.salu("s_mov_b32", "s33", 0)
    for i in range(5):
        a.buf_load(G_WO + 4 * i, 4, G_T3, 16, "s33", flags="nt")
        if i < 4:
            a.salu("s_add_u32", "s33", "s33", 8192)
    a.salu("s_and_b32", "s27", "s3", 1)
    a.salu("s_lshr_b32", "s35", "s3", 1)
    a.valu("v_and_b32", V(G_T0), 31, "v0")
    a.valu("v_bfe_u32", V(G_T1), "v0", 1, 3)
    a.valu("v_lshrrev_b32", V(G_T2), 5, "v0")
    a.valu("v_xor_b32", V(G_T1), V(G_T1), V(G_T2))
    a.valu("v_lshlrev_b32", V(G_T0), 7, V(G_T0))
    a.valu("v_lshl_add_u32", V(G_T0), V(G_T1), 4, V(G_T0))
    a.salu("s_lshl_b32", "s33", "s35", 13)
    a.valu("v_add_u32", V(G_BC), "s33", V(G_T0))
    a.valu("v_bfe_u32", V(G_CB), "v0", 4, 1)
    a.valu("v_lshlrev_b32", V(G_CB), 5, V(G_CB))
    a.valu("v_and_b32", V(G_T0), 1, "v0")
    a.valu("v_lshl_add_u32", V(G_CB), V(G_T0), 4, V(G_CB))
    a.valu("v_bfe_u32", V(G_T0), "v0", 1, 1)
    a.valu("v_lshl_add_u32", V(G_CB), V(G_T0), 3, V(G_CB))
    a.valu("v_bfe_u32", V(G_T1), "v0", 2, 2)
    a.salu("s_lshl_b32", "s33", "s27", 7)
    a.valu("v_add_u32", V(G_T0), "s33", V(G_CB))
    a.valu("v_lshlrev_b32", V(G_AC), 6, V(G_T1))
    a.valu("v_xor_b32", V(G_T0), V(G_T0), V(G_AC))
    a.valu("v_lshl_add_u32", V(G_AC), V(G_T2), 3, V(G_T1))
    a.valu("v_lshl_add_u32", V(G_AC), V(G_AC), 8, V(G_T0))
    a.valu("v_add_u32", V(G_AC), 32768, V(G_AC))
    a.salu("s_lshl_b32", "s64", "s4", 5)
    a.salu("s_lshl_b32", "s65", "s7", 2)
    a.salu("s_add_u32", "s64", "s64", "s65")
    a.salu("s_add_u32", "s64", "s64", "s35")
    a.salu("s_lshl_b32", "s64", "s64", 2)
    a.salu("s_add_u32", "s64", "s64", "s5")
    a.salu("s_lshl_b32", "s64", "s64", 17)
    a.salu("s_lshl_b32", "s65", "s6", 15)
    a.salu("s_add_u32", "s64", "s64", "s65")
    a.salu("s_lshl_b32", "s65", "s27", 12)
    a.salu("s_add_u32", "s64", "s64", "s65")
    a.salu("s_add_u32", "s60", "s58", Q_OFF)
    a.salu("s_addc_u32", "s61", "s59", 0)
    a.srd(20, 60, 61, Q_SZ)
    a.salu("s_mov_b32", "s66", f32bits(SCALE))
    a.salu("s_mov_b32", "s33", 0)
    a.salu("s_mov_b32", "s67", 0)
    for i in range(64):
        a.valu("v_mov_b32", V(G_ACC + i), 0)
    stamp(a, 0)
    a.waitcnt(vm=25 if WARM else 11)
    stamp(a, 1)

    a.label("Lg_loop")
    a.barrier()
    stamp(a, 2)
    a.valu("v_add_u32", V(G_BA), "s67", V(G_BC))
    a.valu("v_add_u32", V(G_AA), "s67", V(G_AC))
    a.valu("v_xor_b32", V(G_AA + 1), 64, V(G_AA))

    def rd(ks):
        b = ks & 1
        if ks:
            a.valu("v_xor_b32", V(G_BA + ks), ks << 5, V(G_BA))
        if "gnolds" in EXP:
            return
        for dtl in range(2):
            for t in range(2):
                a.ds_read("ds_read_b64_tr_b16", G_AF + 8 * b + 4 * dtl + 2 * t, 2, G_AA + dtl, off=(16 * ks + 4 * t) * 256)
        for qt in range(2):
            a.ds_read("ds_read_b128", G_BF + 8 * b + 4 * qt, 4, G_BA + ks, off=4096 * qt)

    ops = dma_ops()
    rd(0)
    for ks in range(4):
        if ks < 3:
            rd(ks + 1)
            a.waitcnt(lgkm=6)
        else:
            a.waitcnt(lgkm=0)
        b = ks & 1
        for dtl in range(2):
            for qt in range(2):
                if "gnomfma" not in EXP:
                    a.mfma32(G_ACC + 32 * dtl + 16 * qt, G_AF + 8 * b + 4 * dtl, G_BF + 8 * b + 4 * qt)
                if ops and qt == 1:
                    f = ops.pop(0)
                    if "gnodma" not in EXP:
                        f()
    assert not ops
    a.salu("s_add_u32", "s67", "s67", GBUF)
    a.scmp("s_cmp_eq_u32", "s67", 3 * GBUF)
    a.salu("s_cselect_b32", "s67", 0, "s67")
    a.salu("s_add_u32", "s33", "s33", 1)
    stamp(a, 3)
    a.waitcnt(vm=6)
    stamp(a, 4)
    a.scmp("s_cmp_eq_u32", "s33", 9)
    a.branch("s_cbranch_scc1", "Lg_epi")
    a.scmp("s_cmp_lt_u32", "s33", 18)
    a.branch("s_cbranch_scc1", "Lg_loop")

    a.barrier()
    for i in range(5):
        a.ds_write("ds_write_b128", G_T3, G_WO + 4 * i, 4, off=i * 8192)
    a.salu("s_add_u32", "s60", "s58", CNT_OFF)
    a.salu("s_addc_u32", "s61", "s59", 0)
    a.srd(16, 60, 61, 64 * 128)
    a.salu("s_lshl_b32", "s28", "s4", 5)
    a.salu("s_lshr_b32", "s29", "s2", 3)
    a.salu("s_add_u32", "s28", "s28", "s29")
    a.salu("s_lshl_b32", "s28", "s28", 7)
    a.salu("s_or_b32", "s29", "s3", "s5")
    a.scmp("s_cmp_lg_u32", "s29", 0)
    a.salu("s_cselect_b32", "s28", 0x10000000, "s28")
    a.valu("v_and_b32", V(G_T0), 31, "v0")
    a.valu("v_lshlrev_b32", V(G_T0), 2, V(G_T0))
    a.valu("v_mov_b32", V(G_T1), 0)
    a.buf_store(G_T1, 1, G_T0, 16, "s28", flags="sc1")
    a.srd(12, 58, 59, WOP_SZ)
    a.valu("v_lshrrev_b32", V(G_T2), 5, "v0")
    a.valu("v_bfe_u32", V(G_T1), "v0", 2, 2)
    a.valu("v_lshl_add_u32", V(G_T0), V(G_T2), 2, V(G_T1))
    a.valu("v_mul_u32_u24", V(G_T0), 1152, V(G_T0))
    a.valu("v_add_u32", V(G_T0), V(G_T0), V(G_CB))
    a.salu("s_mul_i32", "s28", "s27", 16 * 1152)
    a.salu("s_add_u32", "s29", "s35", 1)
    a.salu("s_lshr_b32", "s29", "s29", 1)
    a.salu("s_lshl_b32", "s30", "s35", 2)
    a.salu("s_add_u32", "s29", "s29", "s30")
    a.salu("s_lshl_b32", "s29", "s29", 6)
    a.salu("s_add_u32", "s29", "s29", "s28")
    a.valu("v_add_u32", V(G_T1), "s29", V(G_T0))
    a.salu("s_lshr_b32", "s29", "s35", 1)
    a.salu("s_mul_i32", "s29", "s29", 9 * 64)
    a.salu("s_add_u32", "s29", "s29", 256)
    a.salu("s_add_u32", "s29", "s29", "s28")
    a.valu("v_add_u32", V(G_T2), "s29", V(G_T0))
    a.salu("s_lshl_b32", "s28", "s4", 2)
    a.salu("s_add_u32", "s28", "s28", "s35")
    a.salu("s_lshl_b32", "s28", "s28", 7)
    a.salu("s_add_u32", "s28", "s28", "s32")
    a.salu("s_mul_i32", "s28", "s28", 10240)
    a.salu("s_mul_i32", "s29", "s27", 5120)
    a.salu("s_add_u32", "s28", "s28", "s29")
    a.salu("s_add_u32", "s29", "s28", 4096)
    a.waitcnt(lgkm=0)
    a.barrier()
    for ct in range(5):
        for t in range(2):
            if ct < 4:
                a.ds_read("ds_read_b64_tr_b16", G_AF + 4 * ct + 2 * t, 2, G_T1, off=8 * t * 1152 + 64 * ct)
            else:
                a.ds_read("ds_read_b64_tr_b16", G_AF + 4 * ct + 2 * t, 2, G_T2, off=8 * t * 1152)
    for ct in range(5):
        a.waitcnt(lgkm=8 - 2 * ct)
        a.buf_store(G_AF + 4 * ct, 4, G_L16, 12, "s28" if ct < 4 else "s29", off=(ct & 3) * 1024, flags=QSF)
    stamp(a, 6)

    a.label("Lg_epi")
    for qt in range(2):
        a.salu("s_add_u32", "s65", "s64", qt * 8192)
        for dtl in range(2):
            for hf in range(2):
                b = G_ACC + 32 * dtl + 16 * qt + 8 * hf
                d = G_ACC + 64 + 4 * (4 * qt + 2 * dtl + hf)
                for i in range(8):
                    a.valu("v_mul_f32", V(b + i), "s66", V(b + i))
                for i in range(0, 8, 2):
                    a.valu("v_cvt_pk_bf16_f32", V(d + i // 2), V(b + i), V(b + i + 1))
                a.buf_store(d, 4, G_L16, 20, "s65", off=dtl * 2048 + hf * 1024, flags=QSF)
    a.salu("s_add_u32", "s64", "s64", 16384)
    stamp(a, 5)
    a.scmp("s_cmp_lg_u32", "s33", 9)
    a.branch("s_cbranch_scc1", "Lg_end")
    for i in range(64):
        a.valu("v_mov_b32", V(G_ACC + i), 0)
    for i in range(32):
        a.valu("v_mov_b32", V(G_ACC + 96 + i), V(G_ACC + 64 + i))
    a.branch("s_branch", "Lg_loop")
    a.label("Lg_end")
    if DIAG:
        diag_dump(a, G_T0, 58, 1 << 20)


class Queue:
    def __init__(self, a, kind):
        self.a = a
        self.kind = kind
        self.q = []

    def push(self, tag):
        self.q.append(tag)

    def wait(self, tag):
        if tag not in self.q:
            return
        i = len(self.q) - 1 - self.q[::-1].index(tag)
        n = len(self.q) - 1 - i
        if self.kind == "vm":
            self.a.waitcnt(vm=n)
        else:
            self.a.waitcnt(lgkm=min(n, 15))
        self.q = self.q[i + 1:]

    def drain(self):
        if self.kind == "vm":
            self.a.waitcnt(vm=0)
        else:
            self.a.waitcnt(lgkm=0)
        self.q = []


_uid = [0]


def uid(prefix):
    _uid[0] += 1
    return "%s_%d" % (prefix, _uid[0])


def lds_post(a, vaddr, vcnt, inc=1):
    a.valu("v_add_u32", V(vcnt), inc, V(vcnt))
    a.salu("s_mov_b64", "exec", 1)
    a.ds_write("ds_write_b32", vaddr, vcnt, 1)
    a.salu("s_mov_b64", "exec", -1)


def lds_min4(a, v4, stmp):
    a.valu("v_min3_u32", V(v4), V(v4), V(v4 + 1), V(v4 + 2))
    a.valu("v_min_u32", V(v4), V(v4), V(v4 + 3))
    a.readfirstlane(stmp, v4)


def lds_check(a, vflg, off, v4, stmp, sneed, scnt, tail):
    lspin, lback = uid("Lspin"), uid("Lback")

    def emit(a):
        a.label(lspin)
        a.salu("s_mov_b32", S(scnt), 0)
        lp = lspin + "_l"
        a.label(lp)
        a.misc("s_sleep 1")
        a.ds_read("ds_read_b128", v4, 4, vflg, off=off)
        a.waitcnt(lgkm=0)
        lds_min4(a, v4, stmp)
        a.scmp("s_cmp_ge_u32", S(stmp), S(sneed))
        a.branch("s_cbranch_scc1", lback)
        a.salu("s_add_u32", S(scnt), S(scnt), 1)
        a.scmp("s_cmp_lt_u32", S(scnt), SPIN_CAP)
        a.branch("s_cbranch_scc1", lp)
        a.branch("s_branch", lback)

    tail.append(emit)
    lds_min4(a, v4, stmp)
    a.scmp("s_cmp_lt_u32", S(stmp), S(sneed))
    a.lines.append("    s_cbranch_scc1 %s" % lspin)
    a.n_ins += 1
    a.lines.append(lback + ":")


def gen_main(a):
    a.comment("================ phase 2: attention + output projection ================")
    a.s_load(36, 4, 0, 0)
    a.s_load(40, 2, 0, 16)
    a.s_load(44, 4, 0, 40)
    a.s_load(48, 2, 0, 56)
    a.s_load(52, 4, 0, 80)
    a.s_load(56, 2, 0, 96)
    a.valu("v_and_b32", "v1", 31, "v0")
    a.valu("v_lshlrev_b32", "v1", 2, "v1")
    a.valu("v_add_u32", "v1", FLG, "v1")
    a.valu("v_mov_b32", "v2", 0)
    a.ds_write("ds_write_b32", 1, 2, 1)
    a.salu("s_bfe_u32", "s4", "s2", 0x10002)
    a.salu("s_and_b32", "s5", "s2", 3)
    a.salu("s_lshr_b32", "s6", "s2", 3)
    a.salu("s_lshl_b32", "s7", "s4", 5)
    a.salu("s_add_u32", "s7", "s7", "s6")
    a.waitcnt(lgkm=0)
    a.barrier()
    a.salu("s_and_b32", "s58", "s6", 3)
    a.salu("s_lshr_b32", "s59", "s3", 1)
    a.scmp("s_cmp_lg_u32", "s58", "s59")
    a.branch("s_cbranch_scc1", "Lm_noq")
    a.salu("s_and_b32", "s59", "s3", 1)
    a.salu("s_lshl_b32", "s59", "s59", 12)
    a.valu("v_lshl_add_u32", "v1", "v0", 4, "s59")
    for e in range(2):
        for f in range(8):
            qt, r = f >> 2, f & 3
            a.ds_write("ds_write_b128", 1, G_ACC + (96 if e == 0 else 64) + 4 * f, 4, off=e * SLOT + qt * 8192 + r * 1024)
    a.waitcnt(lgkm=0)
    a.valu("v_mov_b32", "v1", FLG)
    a.valu("v_mov_b32", "v2", 1)
    a.salu("s_mov_b64", "exec", 1)
    a.op("ds_add_u32 v1, v2 offset:%d" % F_QGO, "ds", [], ["v1", "v2"])
    a.salu("s_mov_b64", "exec", -1)
    a.label("Lm_noq")
    a.scmp("s_cmp_eq_u32", "s4", 1)
    for i in range(6):
        a.salu("s_cselect_b32", S(36 + i), S(44 + i), S(36 + i))
    a.salu("s_lshl_b32", "s58", "s7", 7)
    a.salu("s_add_u32", "s58", "s58", CNT_OFF)
    a.salu("s_add_u32", "s24", "s56", "s58")
    a.salu("s_addc_u32", "s25", "s57", 0)
    a.salu("s_lshl_b32", "s58", "s7", 2)
    a.salu("s_add_u32", "s58", "s58", "s5")
    a.salu("s_lshl_b32", "s59", "s58", 17)
    a.salu("s_add_u32", "s59", "s59", Q_OFF)
    a.salu("s_add_u32", "s60", "s56", "s59")
    a.salu("s_addc_u32", "s61", "s57", 0)
    a.srd(16, 60, 61, 131072)
    a.scmp("s_cmp_ge_u32", "s3", 4)
    a.branch("s_cbranch_scc1", "Lp_start")
    gen_A(a)
    gen_P(a)
    a.label("Lm_done")
    a.raw("    s_endpgm")


def signal_phase1(a, vflg, t0, t1, t2, t3, st, st2):
    lsk = uid("Lsg")
    a.valu("v_mov_b32", V(t1), 1)
    a.salu("s_mov_b64", "exec", 1)
    a.op("ds_add_rtn_u32 %s, %s, %s offset:%d" % (V(t0), V(vflg), V(t1), F_SC), "ds", [V(t0)], [V(vflg), V(t1)])
    a.salu("s_mov_b64", "exec", -1)
    a.waitcnt(lgkm=0)
    a.readfirstlane(st, t0)
    a.scmp("s_cmp_lg_u32", S(st), 7)
    a.branch("s_cbranch_scc1", lsk)
    a.salu("s_lshl_b32", S(st), "s4", 5)
    a.salu("s_lshl_b32", S(st2), "s5", 3)
    a.salu("s_add_u32", S(st), S(st), S(st2))
    a.salu("s_lshr_b32", S(st2), "s6", 2)
    a.salu("s_add_u32", S(st), S(st), S(st2))
    a.salu("s_lshl_b32", S(st), S(st), 2)
    a.valu("v_mov_b32", V(t0), S(st))
    a.salu("s_lshl_b32", S(st), "s4", 2)
    a.salu("s_add_u32", S(st), S(st), "s5")
    a.salu("s_lshl_b32", S(st), S(st), 2)
    a.valu("v_mov_b32", V(t2), S(st))
    a.valu("v_mov_b32", V(t3), 0x10000)
    a.salu("s_mov_b64", "exec", 1)
    a.op("global_atomic_add %s, %s, s[54:55]" % (V(t0), V(t1)), "vmem", [], [V(t0), V(t1), "s54", "s55"])
    a.op("global_atomic_add %s, %s, s[54:55]" % (V(t2), V(t3)), "vmem", [], [V(t2), V(t3), "s54", "s55"])
    a.salu("s_mov_b64", "exec", -1)
    a.label(lsk)


A_KB = 2
A_VB = 3
A_QA = 4
A_VO = 5
A_M = 6
A_L0 = 7
A_L1 = 8
A_FLG = 9
A_ONE = 10
A_CNT = 11
A_FW = 12
A_AD = 14
A_T0 = 22
A_T1 = 23
A_T2 = 24
A_T3 = 25
A_CL = 26
A_NM = 32
A_Q = 48
A_O = 80
A_S = 144
A_F = 208
A_NF = 8
SA_O = 20
SA_RS = 29
SA_U = 30
SA_OO = 31
SA_C = 32
SA_NL = 33
SA_T = 34
SA_SP = 63
SA_T2 = 64
SA_THR = 66
KVF = os.environ.get("KVF", "nt")
OSF = os.environ.get("OSF", "sc1")
WOF = "sc1"
OLF = os.environ.get("OLF", "sc1")
BURST = int(os.environ.get("BURST", "3"))
NTILE = 72


def a_adv(a):
    a.salu("s_add_u32", S(SA_RS), S(SA_RS), SLOT)
    a.scmp("s_cmp_ge_u32", S(SA_RS), NSLOT * SLOT)
    a.salu("s_cselect_b32", S(SA_RS), 0, S(SA_RS))


def a_top(a, lq, tail):
    stamp(a, 3)
    lq.drain()
    lds_check(a, A_FLG, F_CL, A_CL, SA_T, SA_NL, SA_SP, tail)
    stamp(a, 0)
    a.salu("s_add_u32", S(SA_NL), S(SA_NL), 1)


def a_end(a, lq, inc=1):
    lds_post(a, A_FW, A_CNT, inc)
    lq.push("cdadd")
    a.ds_read("ds_read_b128", A_CL, 4, A_FLG, off=F_CL)
    lq.push("clread")
    a_adv(a)


def a_qstep(a, tail):
    lq = Queue(a, "lgkm")
    lq.push("clread")
    a.salu("s_add_u32", S(SA_NL), S(SA_NL), 1)
    a_top(a, lq, tail)
    a.salu("s_mov_b32", S(SA_T2), S(SA_RS))
    a_adv(a)
    a.scmp("s_cmp_ge_u32", "s3", 2)
    a.salu("s_cselect_b32", S(SA_T2), S(SA_RS), S(SA_T2))
    a.valu("v_add_u32", V(A_AD), S(SA_T2), V(A_QA))
    for s in range(8):
        a.ds_read("ds_read_b128", A_Q + 4 * s, 4, A_AD, off=1024 * s)
    a_unit_init(a)
    a.waitcnt(lgkm=0)
    a_end(a, lq, 2)


def a_step(a, pos, tail):
    lq = Queue(a, "lgkm")
    lq.push("clread")
    a_top(a, lq, tail)
    is_k = pos < 2
    hf = pos & 1
    if is_k:
        a.valu("v_add_u32", V(A_AD), S(SA_RS), V(A_KB))
        for s in range(1, 8):
            a.valu("v_xor_b32", V(A_AD + s), s << 5, V(A_AD))
        seq = [(s, kt) for s in range(8) for kt in range(2)]
    else:
        a.valu("v_add_u32", V(A_AD), S(SA_RS), V(A_VB))
        for dt in range(1, 4):
            a.valu("v_xor_b32", V(A_AD + dt), dt << 6, V(A_AD))
        seq = [(kk, dt) for kk in range(4) for dt in range(4)]
    n = 16
    depth = A_NF - 1

    def rd(i):
        f = A_F + 4 * (i % A_NF)
        if is_k:
            s, kt = seq[i]
            a.ds_read("ds_read_b128", f, 4, A_AD + s, off=kt * 8192)
            lq.push(("f", i))
        else:
            kk, dt = seq[i]
            for t in range(2):
                a.ds_read("ds_read_b64_tr_b16", f + 2 * t, 2, A_AD + dt, off=(16 * kk + 8 * t) * 256)
                lq.push(("f", i) if t else ("f0", i))

    if "nocomp" in EXP:
        a_end(a, lq)
        return
    for i in range(depth):
        rd(i)
    if pos == 2:
        a_softmax(a, lambda: None)
    ended = False
    for i in range(n):
        lq.wait(("f", i))
        if not ended and not any(isinstance(x, tuple) for x in lq.q) and i + depth >= n:
            a_end(a, lq)
            ended = True
        f = A_F + 4 * (i % A_NF)
        if is_k:
            s, kt = seq[i]
            d = A_S + 16 * (2 * hf + kt)
            a.mfma32(d, f, A_Q + 4 * s, A_NM if s == 0 else None)
        else:
            kk, dt = seq[i]
            a.mfma32(A_O + 16 * dt, f, A_S + 16 * hf + 4 * kk)
        if i + depth < n:
            rd(i + depth)
        if i == n - 4 and not ended:
            lq.wait(("f", n - 1))
            a_end(a, lq)
            ended = True
    assert ended


def a_softmax(a, mid):
    S0 = A_S
    a.valu("v_max3_f32", V(A_T0), V(S0), V(S0 + 1), V(S0 + 2))
    a.valu("v_max3_f32", V(A_T1), V(S0 + 3), V(S0 + 4), V(S0 + 5))
    i = 6
    tog = 0
    while i + 1 < 64:
        t = A_T0 if tog == 0 else A_T1
        a.valu("v_max3_f32", V(t), V(t), V(S0 + i), V(S0 + i + 1))
        i += 2
        tog ^= 1
    a.valu("v_max_f32", V(A_T0), V(A_T0), V(A_T1))
    a.valu("v_mov_b32", V(A_T1), V(A_T0))
    a.permlane32_swap(A_T0, A_T1)
    a.valu("v_max_f32", V(A_T0), V(A_T0), V(A_T1))
    lfast = uid("Lfast")
    a.valu("v_cmp_lt_f32", "vcc", S(SA_THR), V(A_T0), extra_w=["vcc"])
    a.branch("s_cbranch_vccz", lfast)
    a.valu("v_max_f32", V(A_T1), S(SA_THR), V(A_T0))
    a.valu("v_max_f32", V(A_T2), 0, V(A_T0))
    a.scmp("s_cmp_eq_u32", S(SA_C), 0)
    a.salu("s_cselect_b64", "vcc", -1, 0)
    a.valu("v_cndmask_b32", V(A_T0), V(A_T2), V(A_T0), "vcc")
    a.valu("v_sub_f32", V(A_T1), 0, V(A_T0))
    a.valu("v_exp_f32", V(A_T1), V(A_T1))
    a.valu("v_cndmask_b32", V(A_T1), V(A_T1), 0, "vcc", mods="")
    a.valu("v_add_f32", V(A_M), V(A_M), V(A_T0))
    a.valu("v_mul_f32", V(A_L0), V(A_L0), V(A_T1))
    a.valu("v_mul_f32", V(A_L1), V(A_L1), V(A_T1))
    for i in range(64):
        a.valu("v_sub_f32", V(S0 + i), V(S0 + i), V(A_T0))
    for i in range(64):
        a.valu("v_mul_f32", V(A_O + i), V(A_O + i), V(A_T1))
    a.valu("v_sub_f32", V(A_NM), 0, V(A_M))
    for i in range(1, 16):
        a.valu("v_mov_b32", V(A_NM + i), V(A_NM))
    a.salu("s_mov_b32", S(SA_THR), f32bits(THRESH))
    a.label(lfast)
    mid()
    for i in range(0, 64, 2):
        a.valu("v_exp_f32", V(S0 + i), V(S0 + i))
        a.valu("v_exp_f32", V(S0 + i + 1), V(S0 + i + 1))
        if i >= 2:
            k = i - 2
            a.valu("v_add_f32", V(A_L0), V(A_L0), V(S0 + k))
            a.valu("v_add_f32", V(A_L1), V(A_L1), V(S0 + k + 1))
            a.valu("v_cvt_pk_bf16_f32", V(S0 + k // 2), V(S0 + k), V(S0 + k + 1))
    a.valu("v_add_f32", V(A_L0), V(A_L0), V(S0 + 62))
    a.valu("v_add_f32", V(A_L1), V(A_L1), V(S0 + 63))
    a.valu("v_cvt_pk_bf16_f32", V(S0 + 31), V(S0 + 62), V(S0 + 63))
    if "ast" in EXP:
        stamp(a, 7)


def a_unit_init(a):
    a.valu("v_mov_b32", V(A_M), 0)
    for i in range(16):
        a.valu("v_mov_b32", V(A_NM + i), 0)
    a.salu("s_mov_b32", S(SA_THR), 0xFF800000)


def gen_A(a):
    tail = []
    diag_init(a)
    a.valu("v_lshrrev_b32", "v1", 4, "v0")
    a.valu("v_and_b32", V(A_T0), 15, "v0")
    a.valu("v_lshrrev_b32", V(A_T2), 5, "v0")
    a.valu("v_xor_b32", V(A_T3), V(A_T2), V(A_T0))
    a.valu("v_and_b32", V(A_KB), 31, "v0")
    a.valu("v_lshlrev_b32", V(A_KB), 8, V(A_KB))
    a.valu("v_lshl_add_u32", V(A_KB), V(A_T3), 4, V(A_KB))
    a.valu("v_bfe_u32", V(A_T3), "v0", 2, 2)
    a.valu("v_lshl_add_u32", V(A_VB), V(A_T2), 2, V(A_T3))
    a.valu("v_lshlrev_b32", V(A_VB), 8, V(A_VB))
    a.valu("v_lshl_add_u32", V(A_VB), V(A_T3), 6, V(A_VB))
    a.valu("v_and_b32", V(A_T3), 1, "v1")
    a.valu("v_lshl_add_u32", V(A_VB), V(A_T3), 5, V(A_VB))
    a.valu("v_and_b32", V(A_AD), 3, "v0")
    a.valu("v_lshl_add_u32", V(A_VB), V(A_AD), 3, V(A_VB))
    a.salu("s_and_b32", "s60", "s3", 1)
    a.salu("s_lshl_b32", "s59", "s60", 13)
    a.valu("v_lshl_add_u32", V(A_QA), "v0", 4, "s59")
    a.salu("s_lshr_b32", "s59", "s3", 1)
    a.salu("s_lshl_b32", "s59", "s59", 14)
    a.salu("s_lshl_b32", "s60", "s60", 10)
    a.salu("s_add_u32", "s59", "s59", "s60")
    a.salu("s_add_u32", "s59", "s59", OBUF)
    a.valu("v_lshl_add_u32", V(A_VO), "v0", 4, "s59")
    a.valu("v_mov_b32", V(A_FLG), FLG)
    for i in range(64):
        a.valu("v_mov_b32", V(A_O + i), 0)
    a.valu("v_mov_b32", V(A_L0), 0)
    a.valu("v_mov_b32", V(A_L1), 0)
    a.valu("v_mov_b32", V(A_ONE), 0)
    a.valu("v_mov_b32", V(A_CNT), 0)
    a.salu("s_lshl_b32", "s59", "s3", 2)
    a.salu("s_add_u32", "s59", "s59", FLG + F_CD)
    a.valu("v_mov_b32", V(A_FW), "s59")
    a.salu("s_mov_b32", S(SA_RS), 0)
    a.salu("s_mov_b32", S(SA_U), 0)
    a.salu("s_mov_b32", S(SA_OO), 0)
    a.waitcnt(vm=0)
    signal_phase1(a, A_FLG, A_T0, A_T1, A_T2, A_T3, SA_T, SA_T2)
    a.ds_read("ds_read_b128", A_CL, 4, A_FLG, off=F_CL)
    a.salu("s_mov_b32", S(SA_NL), 1)
    a.misc("s_setprio 2")
    stamp(a, 4)

    a.label("La_unit")
    a_qstep(a, tail)
    a.salu("s_mov_b32", S(SA_C), 0)
    a.label("La_chunk")
    for pos in range(4):
        a.comment("---- A step pos %d ----" % pos)
        a_step(a, pos, tail)
    a.salu("s_add_u32", S(SA_C), S(SA_C), 1)
    a.scmp("s_cmp_lt_u32", S(SA_C), 4)
    a.branch("s_cbranch_scc1", "La_chunk")
    a.waitcnt(lgkm=0)
    a.ds_read("ds_read_b128", A_AD, 4, A_FLG, off=F_OF)
    a.valu("v_add_f32", V(A_T0), V(A_L0), V(A_L1))
    a.valu("v_mov_b32", V(A_T1), V(A_T0))
    a.permlane32_swap(A_T0, A_T1)
    a.valu("v_add_f32", V(A_T0), V(A_T0), V(A_T1))
    a.valu("v_rcp_f32", V(A_T0), V(A_T0))
    for dt in range(4):
        for kk in range(2):
            b = A_O + 16 * dt + 8 * kk
            d = A_S + 8 * dt + 4 * kk
            for i in range(8):
                a.valu("v_mul_f32", V(b + i), V(b + i), V(A_T0))
            for i in range(0, 8, 2):
                a.valu("v_cvt_pk_bf16_f32", V(d + i // 2), V(b + i), V(b + i + 1))
    stamp(a, 3)
    a.waitcnt(lgkm=0)
    lds_check(a, A_FLG, F_OF, A_AD, SA_T, SA_U, SA_SP, tail)
    stamp(a, 1)
    for f in range(8):
        a.ds_write("ds_write_b128", A_VO, A_S + 4 * f, 4, off=f * 2048)
    a.waitcnt(lgkm=0)
    a.valu("v_add_u32", V(A_T2), F_OW - F_CD, V(A_FW))
    lds_post(a, A_T2, A_ONE)
    a.salu("s_add_u32", S(SA_U), S(SA_U), 1)
    a.scmp("s_cmp_lt_u32", S(SA_U), 4)
    a.branch("s_cbranch_scc1", "La_unit")
    a.waitcnt(lgkm=0)
    stamp(a, 5)
    diag_dump(a, A_T2)
    a.branch("s_branch", "Lm_done")
    for t in tail:
        t(a)


P_FW = 0
P_L16 = 1
P_VDK = 2
P_VDV = 6
P_VDQ = 7
P_ACC = 8
P_OF = 152
P_WF = 168
P_NW = 19
P_FLG = 244
P_CNT = 245
P_OCNT = 246
P_OA = 247
P_F = 248
P_T0 = 248
P_T1 = 249
P_T2 = 250
P_T3 = 251
SP_K = 8
SP_V = 12
SP_Q = 16
SP_X = 20
SP_WO = 28
SP_OUT = 32
SP_YU = 26
SP_W = 27
SP_A = 62
SP_B = 63
SP_T = 64
SP_T2 = 65
SP_PEND = 66
SP_SPIN = 67
SP_I = 68
SP_TN = 69
SP_SH = 70
SP_KN = 71
SP_VN = 72
SP_QN = 73
SP_WS = 74
SP_WLIM = 75
SP_PI = 76
SP_YT = 77
SP_CD = 78
SP_U0 = 79
SP_QOK = 48
YPRIO = int(os.environ.get("YPRIO", "3"))
INFL = int(os.environ.get("INFL", "3"))
PHI = int(os.environ.get("PHI", "4"))


def p_issue_tile(a, with_q=True):
    lk, lv, ld = uid("Ltk"), uid("Ltv"), uid("Ltd")
    if with_q:
        a.scmp("s_cmp_ge_u32", S(SP_PI), 2)
        a.branch("s_cbranch_scc1", lk)
        lq = uid("Ltq")
        a.scmp("s_cmp_lg_u32", S(SP_QOK), 0)
        a.branch("s_cbranch_scc1", lq)
        a.salu("s_lshl_b32", S(SP_T), "s4", 5)
        a.salu("s_lshl_b32", S(SP_T2), "s5", 3)
        a.salu("s_add_u32", S(SP_T), S(SP_T), S(SP_T2))
        a.salu("s_lshr_b32", S(SP_T2), "s6", 2)
        a.salu("s_add_u32", S(SP_T), S(SP_T), S(SP_T2))
        a.salu("s_lshl_b32", S(SP_T), S(SP_T), 2)
        a.valu("v_mov_b32", V(P_T0), S(SP_T))
        lp = uid("Ltp")
        a.label(lp)
        a.op("global_load_dword %s, %s, s[54:55] sc1" % (V(P_T1), V(P_T0)), "vmem", [V(P_T1)], [V(P_T0), "s54", "s55"])
        a.waitcnt(vm=0)
        a.readfirstlane(SP_T, P_T1)
        a.salu("s_and_b32", S(SP_T), S(SP_T), 255)
        a.salu("s_add_u32", S(SP_QOK), S(SP_QOK), 1)
        a.scmp("s_cmp_ge_u32", S(SP_T), 4)
        a.branch("s_cbranch_scc1", lq)
        a.misc("s_sleep 8")
        a.scmp("s_cmp_lt_u32", S(SP_QOK), SPIN_CAP)
        a.branch("s_cbranch_scc1", lp)
        a.label(lq)
        a.salu("s_mov_b32", "m0", S(SP_WS))
        for i in range(4):
            a.dma(P_VDQ, SP_Q, S(SP_QN), off=1024 * i, flags=QLF)
        a.salu("s_add_u32", S(SP_QN), S(SP_QN), SLOT)
        a.salu("s_and_b32", S(SP_QN), S(SP_QN), 131071)
        a.branch("s_branch", ld)
        a.label(lk)
    a.salu("s_mov_b32", "m0", S(SP_WS))
    a.op("s_bitcmp1_b32 %s, 1" % S(SP_PI), "salu", [], [S(SP_PI)])
    a.branch("s_cbranch_scc0", lv)
    for i in range(4):
        a.dma(P_VDK + i, SP_K, S(SP_KN), off=1024 * i, flags=KVF)
    a.salu("s_add_u32", S(SP_KN), S(SP_KN), SLOT)
    a.salu("s_and_b32", S(SP_KN), S(SP_KN), 524287)
    a.branch("s_branch", ld)
    a.label(lv)
    for i in range(4):
        a.dma(P_VDV, SP_V, S(SP_VN), off=1024 * i, flags=KVF)
    a.salu("s_add_u32", S(SP_VN), S(SP_VN), SLOT)
    a.salu("s_and_b32", S(SP_VN), S(SP_VN), 524287)
    a.label(ld)
    a.salu("s_add_u32", S(SP_WS), S(SP_WS), SLOT)
    a.scmp("s_cmp_ge_u32", S(SP_WS), S(SP_WLIM))
    a.salu("s_cselect_b32", S(SP_T), NSLOT * SLOT, 0)
    a.salu("s_sub_u32", S(SP_WS), S(SP_WS), S(SP_T))
    a.salu("s_add_u32", S(SP_PI), S(SP_PI), 1)
    a.scmp("s_cmp_eq_u32", S(SP_PI), 18)
    a.salu("s_cselect_b32", S(SP_PI), 0, S(SP_PI))
    a.salu("s_add_u32", S(SP_TN), S(SP_TN), 1)


def p_retire_one(a):
    ld = uid("Lrd")
    labs = [uid("Lr") for _ in range(INFL)]
    for k in range(INFL, 1, -1):
        a.scmp("s_cmp_lg_u32", S(SP_PEND), k)
        a.branch("s_cbranch_scc1", labs[k - 1])
        a.waitcnt(vm=4 * (k - 1))
        a.branch("s_branch", ld)
        a.label(labs[k - 1])
    a.waitcnt(vm=0)
    a.label(ld)
    lds_post(a, P_FW, P_CNT)
    a.salu("s_sub_u32", S(SP_PEND), S(SP_PEND), 1)


def gen_y(a):
    vq = Queue(a, "vm")
    lq = Queue(a, "lgkm")
    a.salu("s_add_u32", S(SP_A), S(SP_YU), S(SP_U0))
    a.salu("s_and_b32", S(SP_A), S(SP_A), 3)
    a.salu("s_mul_i32", S(SP_A), S(SP_A), 81920)

    def wload(i):
        a.buf_load(P_WF + 4 * (i % P_NW), 4, P_L16, SP_WO, S(SP_A), off=(i & 3) * 1024, flags=WOF)
        vq.push(("w", i))
        if (i & 3) == 3:
            a.salu("s_add_u32", S(SP_A), S(SP_A), 4096)

    def oread(ks):
        for qh in range(2):
            a.ds_read("ds_read_b128", P_OF + 8 * (ks & 1) + 4 * qh, 4, P_OA, off=ks * 2048 + qh * 1024)
            lq.push(("o", ks, qh))

    for i in range(P_NW):
        wload(i)
    oread(0)
    for ks in range(16):
        if ks < 15:
            oread(ks + 1)
        lq.wait(("o", ks, 1))
        if ks == 15:
            a.valu("v_add_u32", V(P_T0), F_OF - F_CL, V(P_FW))
            lds_post(a, P_T0, P_OCNT)
        o0 = P_OF + 8 * (ks & 1)
        o1 = o0 + 4
        for ct in range(5):
            i = 5 * ks + ct
            vq.wait(("w", i))
            w = P_WF + 4 * (i % P_NW)
            if ct < 4:
                a.mfma32(P_ACC + 32 * ct, w, o0)
                a.mfma32(P_ACC + 32 * ct + 16, w, o1)
            else:
                l1, l2 = uid("Lsh"), uid("Lsh")
                a.scmp("s_cmp_lg_u32", S(SP_SH), 0)
                a.lines.append("    s_cbranch_scc1 %s" % l1)
                a.mfma32(P_ACC + 128, w, o0)
                a.lines.append("    s_branch %s" % l2)
                a.lines.append(l1 + ":")
                a.mfma32(P_ACC + 128, w, o1)
                a.lines.append(l2 + ":")
            if i + P_NW < 80:
                wload(i + P_NW)


def gen_P(a):
    a.label("Lp_start")
    diag_init(a)
    a.misc("s_setprio 3")
    a.salu("s_sub_u32", S(SP_W), "s3", 4)
    a.valu("v_lshlrev_b32", V(P_L16), 4, "v0")
    a.salu("s_lshl_b32", "s59", "s6", 4)
    a.salu("s_lshl_b32", "s60", "s5", 2)
    a.salu("s_add_u32", "s59", "s59", "s60")
    a.salu("s_lshl_b32", "s59", "s59", 17)
    a.salu("s_add_u32", "s38", "s38", "s59")
    a.salu("s_addc_u32", "s39", "s39", 0)
    a.salu("s_add_u32", "s40", "s40", "s59")
    a.salu("s_addc_u32", "s41", "s41", 0)
    a.srd(SP_K, 38, 39, 4 * 131072)
    a.srd(SP_V, 40, 41, 4 * 131072)
    a.valu("v_lshrrev_b32", V(P_T2), 4, "v0")
    a.valu("v_and_b32", V(P_T0), 15, "v0")
    a.salu("s_lshl_b32", "s59", S(SP_W), 12)
    a.valu("v_lshl_add_u32", V(P_T1), V(P_T2), 8, "s59")
    for i in range(4):
        a.valu("v_add_u32", V(P_T3), 4 * i, V(P_T2))
        a.valu("v_xor_b32", V(P_T3), V(P_T3), V(P_T0))
        a.valu("v_lshl_add_u32", V(P_VDK + i), V(P_T3), 4, V(P_T1))
    a.valu("v_lshlrev_b32", V(P_T3), 2, V(P_T2))
    a.valu("v_xor_b32", V(P_T3), V(P_T3), V(P_T0))
    a.valu("v_lshl_add_u32", V(P_VDV), V(P_T3), 4, V(P_T1))
    a.valu("v_add_u32", V(P_VDQ), "s59", V(P_L16))
    a.valu("v_mov_b32", V(P_FLG), FLG)
    a.valu("v_mov_b32", V(P_CNT), 0)
    a.valu("v_mov_b32", V(P_OCNT), 0)
    a.valu("v_add_u32", V(P_OA), OBUF, V(P_L16))
    a.salu("s_lshl_b32", "s60", S(SP_W), 2)
    a.salu("s_add_u32", "s60", "s60", FLG + F_CL)
    a.valu("v_mov_b32", V(P_FW), "s60")
    for r in (SP_YU, SP_PEND, SP_SPIN, SP_QOK):
        a.salu("s_mov_b32", S(r), 0)
    a.salu("s_and_b32", S(SP_U0), "s6", 3)
    a.salu("s_lshl_b32", S(SP_KN), S(SP_U0), 17)
    a.salu("s_mov_b32", S(SP_VN), S(SP_KN))
    a.salu("s_add_u32", S(SP_QN), S(SP_U0), 1)
    a.salu("s_and_b32", S(SP_QN), S(SP_QN), 3)
    a.salu("s_lshl_b32", S(SP_QN), S(SP_QN), 15)
    a.salu("s_add_u32", S(SP_WLIM), "s59", NSLOT * SLOT)
    a.salu("s_add_u32", S(SP_WS), "s59", 2 * SLOT)
    a.salu("s_mov_b32", S(SP_TN), 2)
    a.salu("s_mov_b32", S(SP_PI), 2)
    for t in range(INFL):
        p_issue_tile(a, False)
    a.salu("s_mov_b32", S(SP_PEND), INFL)
    a.label("Lp_qw")
    a.ds_read("ds_read_b32", P_T0, 1, P_FLG, off=F_QGO)
    a.waitcnt(lgkm=0)
    a.readfirstlane(SP_T, P_T0)
    a.scmp("s_cmp_ge_u32", S(SP_T), 2)
    a.branch("s_cbranch_scc1", "Lp_qgo")
    a.misc("s_sleep 1")
    a.salu("s_add_u32", S(SP_SPIN), S(SP_SPIN), 1)
    a.scmp("s_cmp_lt_u32", S(SP_SPIN), 8 * SPIN_CAP)
    a.branch("s_cbranch_scc1", "Lp_qw")
    a.label("Lp_qgo")
    a.salu("s_mov_b32", S(SP_SPIN), 0)
    lds_post(a, P_FW, P_CNT, 2)
    a.waitcnt(vm=4 * INFL)
    signal_phase1(a, P_FLG, P_T0, P_T1, P_T2, P_T3, SP_T, SP_T2)
    a.salu("s_lshl_b32", "s59", "s4", 2)
    a.salu("s_add_u32", "s59", "s59", S(SP_W))
    a.salu("s_lshl_b32", "s59", "s59", 4)
    a.salu("s_lshl_b32", "s60", "s5", 2)
    a.salu("s_add_u32", "s59", "s59", "s60")
    a.salu("s_mul_i32", "s59", "s59", 81920)
    a.salu("s_add_u32", "s59", "s59", WOP_OFF)
    a.salu("s_add_u32", "s60", "s56", "s59")
    a.salu("s_addc_u32", "s61", "s57", 0)
    a.srd(SP_WO, 60, 61, 4 * 81920)
    a.salu("s_mul_i32", "s59", "s7", 16 * 18432)
    a.salu("s_add_u32", "s59", "s59", O_OFF)
    a.salu("s_add_u32", "s60", "s56", "s59")
    a.salu("s_addc_u32", "s61", "s57", 0)
    a.srd(SP_X, 60, 61, 16 * 18432)
    a.srd(SP_OUT, 52, 53, 32 * 64 * 2304)
    a.salu("s_and_b32", S(SP_SH), S(SP_W), 1)
    a.salu("s_and_b32", S(SP_YT), "s6", 3)
    a.salu("s_mul_i32", S(SP_YT), S(SP_YT), PHI)
    a.salu("s_add_u32", S(SP_YT), S(SP_YT), 18)
    for i in range(144):
        a.valu("v_mov_b32", V(P_ACC + i), 0)

    a.label("Lp_loop")
    stamp(a, 5)
    a.scmp("s_cmp_lt_u32", S(SP_PEND), INFL)
    a.branch("s_cbranch_scc1", "Lp_chk")
    p_retire_one(a)
    stamp(a, 1)
    a.label("Lp_chk")
    a.ds_read("ds_read_b128", P_F, 4, P_FLG, off=F_CD)
    a.ds_read("ds_read_b128", P_F + 4, 4, P_FLG, off=F_OW)
    a.waitcnt(lgkm=0)
    lds_min4(a, P_F, SP_CD)
    lds_min4(a, P_F + 4, SP_T2)
    a.scmp("s_cmp_le_u32", S(SP_T2), S(SP_YU))
    a.branch("s_cbranch_scc1", "Lp_tile")
    a.salu("s_min_u32", S(SP_T), S(SP_YT), NTILE)
    a.scmp("s_cmp_ge_u32", S(SP_CD), S(SP_T))
    a.branch("s_cbranch_scc1", "Lp_y")
    a.label("Lp_tile")
    a.scmp("s_cmp_ge_u32", S(SP_TN), NTILE)
    a.branch("s_cbranch_scc1", "Lp_nospace")
    a.salu("s_add_u32", S(SP_T), S(SP_CD), NSLOT)
    a.scmp("s_cmp_ge_u32", S(SP_TN), S(SP_T))
    a.branch("s_cbranch_scc1", "Lp_nospace")
    p_issue_tile(a)
    a.salu("s_add_u32", S(SP_PEND), S(SP_PEND), 1)
    stamp(a, 0)
    a.branch("s_branch", "Lp_loop")
    a.label("Lp_nospace")
    a.scmp("s_cmp_eq_u32", S(SP_PEND), 0)
    a.branch("s_cbranch_scc1", "Lp_nap")
    p_retire_one(a)
    stamp(a, 1)
    a.branch("s_branch", "Lp_loop")
    a.label("Lp_nap")
    a.salu("s_add_u32", S(SP_SPIN), S(SP_SPIN), 1)
    a.scmp("s_cmp_ge_u32", S(SP_SPIN), 4 * SPIN_CAP)
    a.branch("s_cbranch_scc1", "Lp_fin")
    a.misc("s_sleep 1")
    stamp(a, 2)
    a.branch("s_branch", "Lp_loop")

    a.label("Lp_y")
    a.scmp("s_cmp_eq_u32", S(SP_PEND), 0)
    a.branch("s_cbranch_scc1", "Lp_y2")
    p_retire_one(a)
    a.branch("s_branch", "Lp_y")
    a.label("Lp_y2")
    a.scmp("s_cmp_lg_u32", S(SP_YU), 0)
    a.branch("s_cbranch_scc1", "Lp_y3")
    a.salu("s_lshl_b32", S(SP_T), "s4", 4)
    a.valu("v_mov_b32", V(P_F + 4), S(SP_T))
    a.salu("s_mov_b32", S(SP_I), 0)
    a.label("Lp_wp")
    a.op("global_load_dwordx4 %s, %s, s[54:55] sc1" % (V(P_F, 4), V(P_F + 4)), "vmem", vr(P_F, 4), [V(P_F + 4), "s54", "s55"])
    a.waitcnt(vm=0)
    for i in range(4):
        a.valu("v_bfe_u32", V(P_F + i), V(P_F + i), 16, 8)
    lds_min4(a, P_F, SP_T)
    a.scmp("s_cmp_ge_u32", S(SP_T), 32)
    a.branch("s_cbranch_scc1", "Lp_y3")
    a.misc("s_sleep 8")
    a.salu("s_add_u32", S(SP_I), S(SP_I), 1)
    a.scmp("s_cmp_lt_u32", S(SP_I), SPIN_CAP)
    a.branch("s_cbranch_scc1", "Lp_wp")
    a.label("Lp_y3")
    stamp(a, 1)
    if YPRIO != 3:
        a.misc("s_setprio %d" % YPRIO)
    gen_y(a)
    if YPRIO != 3:
        a.misc("s_setprio 3")
    stamp(a, 4)
    a.salu("s_add_u32", S(SP_YU), S(SP_YU), 1)
    a.salu("s_add_u32", S(SP_YT), S(SP_YT), 18)
    a.scmp("s_cmp_lt_u32", S(SP_YU), 4)
    a.branch("s_cbranch_scc1", "Lp_loop")
    a.label("Lp_fin")

    a.scmp("s_cmp_eq_u32", S(SP_W), "s5")
    a.branch("s_cbranch_scc1", "Lp_own")
    a.salu("s_lshl_b32", S(SP_T), S(SP_W), 2)
    a.salu("s_add_u32", S(SP_T), S(SP_T), "s5")
    a.salu("s_mul_i32", S(SP_A), S(SP_T), 18432)
    for x in range(18):
        r = P_ACC + 8 * x
        for i in range(4):
            a.valu("v_cvt_pk_bf16_f32", V(r + i), V(r + 2 * i), V(r + 2 * i + 1))
        a.buf_store(r, 4, P_L16, SP_X, S(SP_A), off=(x & 3) * 1024, flags="sc1")
        if (x & 3) == 3:
            a.salu("s_add_u32", S(SP_A), S(SP_A), 4096)
    a.waitcnt(vm=0)
    a.branch("s_branch", "Lp_sent")
    a.label("Lp_own")
    for x in range(36):
        a.ds_write("ds_write_b128", P_L16, P_ACC + 4 * x, 4, off=x * 1024)
    a.waitcnt(lgkm=0)
    a.label("Lp_sent")
    a.valu("v_mov_b32", V(P_T1), 1)
    a.salu("s_mov_b64", "exec", 1)
    a.op("ds_add_rtn_u32 %s, %s, %s offset:%d" % (V(P_T0), V(P_FLG), V(P_T1), F_XC), "ds", [V(P_T0)], [V(P_FLG), V(P_T1)])
    a.salu("s_mov_b64", "exec", -1)
    a.waitcnt(lgkm=0)
    a.readfirstlane(SP_T, P_T0)
    a.valu("v_mov_b32", V(P_T2), 0)
    a.salu("s_mov_b32", S(SP_PEND), S(SP_T))
    a.scmp("s_cmp_lg_u32", S(SP_T), 3)
    a.branch("s_cbranch_scc1", "Lp_xpoll")
    a.salu("s_mov_b64", "exec", 1)
    a.op("global_atomic_add %s, %s, s[24:25]" % (V(P_T2), V(P_T1)), "vmem", [], [V(P_T2), V(P_T1), "s24", "s25"])
    a.salu("s_mov_b64", "exec", -1)
    a.label("Lp_xpoll")
    stamp(a, 6)
    a.valu("v_bfe_u32", V(P_T3), V(P_L16), 4, 5)
    a.valu("v_mul_u32_u24", V(P_T3), 2304, V(P_T3))
    a.valu("v_lshrrev_b32", V(P_T1), 9, V(P_L16))
    a.valu("v_lshl_add_u32", V(P_T3), V(P_T1), 4, V(P_T3))
    a.salu("s_mul_i32", S(SP_KN), "s6", 147456)
    a.salu("s_mul_i32", S(SP_B), "s4", 1152)
    a.salu("s_add_u32", S(SP_KN), S(SP_KN), S(SP_B))
    a.salu("s_add_u32", S(SP_T), "s5", 1)
    a.salu("s_lshr_b32", S(SP_T), S(SP_T), 1)
    a.salu("s_lshl_b32", S(SP_T2), "s5", 2)
    a.salu("s_add_u32", S(SP_T), S(SP_T), S(SP_T2))
    a.salu("s_lshl_b32", S(SP_VN), S(SP_T), 6)
    a.salu("s_lshr_b32", S(SP_T), "s5", 1)
    a.salu("s_mul_i32", S(SP_T), S(SP_T), 9 * 64)
    a.salu("s_add_u32", S(SP_T), S(SP_T), 256)
    a.salu("s_and_b32", S(SP_T2), "s5", 1)
    a.salu("s_mul_i32", S(SP_T2), S(SP_T2), 32 * 2304)
    a.salu("s_add_u32", S(SP_QN), S(SP_T), S(SP_T2))
    a.salu("s_mov_b32", S(SP_SPIN), 0)
    a.scmp("s_cmp_lg_u32", S(SP_PEND), 3)
    a.branch("s_cbranch_scc1", "Lp_xl")
    a.label("Lp_xp")
    a.op("global_load_dword %s, %s, s[24:25] sc1" % (V(P_T0), V(P_T2)), "vmem", [V(P_T0)], [V(P_T2), "s24", "s25"])
    a.waitcnt(vm=0)
    a.readfirstlane(SP_T, P_T0)
    a.scmp("s_cmp_ge_u32", S(SP_T), 4)
    a.branch("s_cbranch_scc1", "Lp_xok")
    a.misc("s_sleep 4")
    a.salu("s_add_u32", S(SP_SPIN), S(SP_SPIN), 1)
    a.scmp("s_cmp_lt_u32", S(SP_SPIN), SPIN_CAP)
    a.branch("s_cbranch_scc1", "Lp_xp")
    a.label("Lp_xok")
    a.valu("v_mov_b32", V(P_T0), 1)
    a.salu("s_mov_b64", "exec", 1)
    a.ds_write("ds_write_b32", P_FLG, P_T0, 1, off=F_XC + 4)
    a.salu("s_mov_b64", "exec", -1)
    a.branch("s_branch", "Lp_xgo")
    a.label("Lp_xl")
    a.misc("s_sleep 1")
    a.ds_read("ds_read_b32", P_T0, 1, P_FLG, off=F_XC + 4)
    a.waitcnt(lgkm=0)
    a.readfirstlane(SP_T, P_T0)
    a.scmp("s_cmp_lg_u32", S(SP_T), 0)
    a.branch("s_cbranch_scc1", "Lp_xgo")
    a.salu("s_add_u32", S(SP_SPIN), S(SP_SPIN), 1)
    a.scmp("s_cmp_lt_u32", S(SP_SPIN), 8 * SPIN_CAP)
    a.branch("s_cbranch_scc1", "Lp_xl")
    a.label("Lp_xgo")
    stamp(a, 7)
    a.salu("s_mul_i32", S(SP_A), "s5", 4 * 18432)
    a.salu("s_lshl_b32", S(SP_T), S(SP_W), 10)
    a.salu("s_add_u32", S(SP_A), S(SP_A), S(SP_T))
    for src in range(4):
        a.scmp("s_cmp_eq_u32", "s5", src)
        a.salu("s_cselect_b32", S(SP_B), 0x10000000, S(SP_A))
        for k in range(5):
            a.buf_load(P_ACC + 20 * src + 4 * k, 4, P_L16, SP_X, S(SP_B), flags="sc1")
            a.salu("s_add_u32", S(SP_B), S(SP_B), 4096)
        a.salu("s_add_u32", S(SP_A), S(SP_A), 18432)
    a.salu("s_lshl_b32", S(SP_T), S(SP_W), 11)
    a.valu("v_add_u32", V(P_T0), S(SP_T), V(P_L16))
    OWN = P_ACC + 80
    for k in range(5):
        for hq in range(2):
            a.ds_read("ds_read_b128", OWN + 8 * k + 4 * hq, 4, P_T0, off=k * 8192 + hq * 1024)
    a.waitcnt(vm=0, lgkm=0)
    for k in range(5):
        for src in range(4):
            for i in range(4):
                pk = P_ACC + 20 * src + 4 * k + i
                a.valu("v_lshlrev_b32", V(P_T0), 16, V(pk))
                a.valu("v_and_b32", V(P_T1), 0xFFFF0000, V(pk))
                a.valu("v_add_f32", V(OWN + 8 * k + 2 * i), V(OWN + 8 * k + 2 * i), V(P_T0))
                a.valu("v_add_f32", V(OWN + 8 * k + 2 * i + 1), V(OWN + 8 * k + 2 * i + 1), V(P_T1))
        r = OWN + 8 * k
        for i in range(4):
            a.valu("v_cvt_pk_bf16_f32", V(r + i), V(r + 2 * i), V(r + 2 * i + 1))
        a.salu("s_add_u32", S(SP_T), S(SP_W), 4 * k)
        a.salu("s_lshr_b32", S(SP_T2), S(SP_T), 2)
        a.salu("s_lshl_b32", S(SP_T2), S(SP_T2), 6)
        a.salu("s_add_u32", S(SP_T2), S(SP_T2), S(SP_VN))
        a.salu("s_bfe_u32", S(SP_I), S(SP_T), 0x10001)
        a.salu("s_mul_i32", S(SP_I), S(SP_I), 32 * 2304)
        a.salu("s_add_u32", S(SP_T2), S(SP_T2), S(SP_I))
        a.scmp("s_cmp_ge_u32", S(SP_T), 16)
        a.salu("s_cselect_b32", S(SP_T2), S(SP_QN), S(SP_T2))
        a.salu("s_and_b32", S(SP_I), S(SP_T), 1)
        a.salu("s_lshl_b32", S(SP_I), S(SP_I), 5)
        a.salu("s_add_u32", S(SP_T2), S(SP_T2), S(SP_I))
        a.salu("s_add_u32", S(SP_T2), S(SP_T2), S(SP_KN))
        a.scmp("s_cmp_ge_u32", S(SP_T), 18)
        a.salu("s_cselect_b32", S(SP_T2), 0x10000000, S(SP_T2))
        a.buf_store(r, 4, P_T3, SP_OUT, S(SP_T2))
    if DIAG:
        a.waitcnt(vm=0)
        stamp(a, 3)
        diag_dump(a, P_T0)
    a.branch("s_branch", "Lm_done")


def main():
    out = sys.argv[1] if len(sys.argv) > 1 else "cdna_kernels/%s.s" % NAME
    a = Asm()
    a.raw(HEADER)
    gen_qproj_kernel(a)
    gen_main(a)
    a.raw('.section .rodata,"a"\n.p2align 6')
    a.raw(kd(NAME + "_kernel", 256, 102 if DIAG else 80, 256))
    open(out, "w").write(a.text())
    print("wrote %s: %d instructions, %d nop states" % (out, a.n_ins, a.nops_inserted))


if __name__ == "__main__":
    main()
```

```python
import math
import struct
import sys
import os

sys.path.insert(0, os.path.dirname(os.path.abspath(__file__)))
from asmlib import Asm, V, S, vr, sr

NAME = "concat_heads__gqa_block_cached__gqa_block_cached__near_ridge"

WOP_OFF = 0
WOP_SZ = 2 * 4 * 16 * 16 * 5 * 1024
Q_OFF = WOP_OFF + WOP_SZ
Q_SZ = 256 * 4 * 32768
O_OFF = Q_OFF + Q_SZ
O_SZ = 64 * 16 * 18432
CNT_OFF = O_OFF + O_SZ
WS_USED = CNT_OFF + 64 * 128

SLOT = 16384
NSLOT = int(os.environ.get("NSLOT", "7"))
OBUF = NSLOT * SLOT
FLG = OBUF + 32768
LDS_MAIN = FLG + 128
F_CD, F_CL, F_OW, F_OF, F_XC, F_QGO, F_SC = 0, 16, 32, 48, 64, 72, 76
LDS_Q = 3 * 49152

SCALE = (128 ** -0.5) * math.log2(math.e)
THRESH = 8.0
SPIN_CAP = 300000

DIAG = bool(int(os.environ.get("DIAG", "0")))
EXP = os.environ.get("EXP", "")
DIAG_OFF = 128 << 20


def f32bits(x):
    return struct.unpack("<I", struct.pack("<f", x))[0]


def stamp(a, acc=None):
    if not DIAG:
        return
    a.op("s_memtime s[80:81]", "smem", ["s80", "s81"], [])
    a.waitcnt(lgkm=0)
    if acc is not None:
        a.salu("s_sub_u32", "s83", "s80", "s82")
        a.salu("s_add_u32", S(84 + acc), S(84 + acc), "s83")
    a.salu("s_mov_b32", "s82", "s80")


def diag_init(a):
    if not DIAG:
        return
    for i in range(8):
        a.salu("s_mov_b32", S(84 + i), 0)
    stamp(a)
    a.salu("s_mov_b32", "s92", "s80")
    a.op("s_memrealtime s[96:97]", "smem", ["s96", "s97"], [])
    a.waitcnt(lgkm=0)


def diag_dump(a, tmpv, wslo=56, extra=0):
    if not DIAG:
        return
    stamp(a)
    a.salu("s_sub_u32", "s93", "s80", "s92")
    a.op("s_memrealtime s[98:99]", "smem", ["s98", "s99"], [])
    a.waitcnt(lgkm=0)
    a.salu("s_sub_u32", "s92", "s98", "s96")
    a.salu("s_lshl_b32", "s83", "s2", 3)
    a.salu("s_add_u32", "s83", "s83", "s3")
    a.salu("s_lshl_b32", "s83", "s83", 6)
    a.salu("s_add_u32", "s83", "s83", DIAG_OFF + extra)
    a.salu("s_add_u32", "s94", S(wslo), "s83")
    a.salu("s_addc_u32", "s95", S(wslo + 1), 0)
    a.valu("v_mov_b32", V(tmpv), 0)
    a.salu("s_mov_b64", "exec", 1)
    for i in range(10):
        a.valu("v_mov_b32", V(tmpv + 1), S(84 + i))
        a.op("global_store_dword %s, %s, s[94:95] offset:%d" % (V(tmpv), V(tmpv + 1), 4 * i), "vmem", [],
             [V(tmpv), V(tmpv + 1), "s94", "s95"])
        a.waitcnt(vm=0)
    a.salu("s_mov_b64", "exec", -1)


HEADER = """; Kernarg layout for this problem (104 bytes, ptrs only, base s[0:1]):
;   offset   0: d_in[0] A_x  shape=(32, 64, 576) dtype=bfloat16
;   offset   8: d_in[1] A_k_cache  shape=(32, 16, 512, 128) dtype=bfloat16
;   offset  16: d_in[2] A_v_cache  shape=(32, 16, 512, 128) dtype=bfloat16
;   offset  24: d_in[3] A_wq  shape=(576, 4096) dtype=bfloat16
;   offset  32: d_in[4] A_wo  shape=(4096, 576) dtype=bfloat16
;   offset  40: d_in[5] B_x  shape=(32, 64, 576) dtype=bfloat16
;   offset  48: d_in[6] B_k_cache  shape=(32, 16, 512, 128) dtype=bfloat16
;   offset  56: d_in[7] B_v_cache  shape=(32, 16, 512, 128) dtype=bfloat16
;   offset  64: d_in[8] B_wq  shape=(576, 4096) dtype=bfloat16
;   offset  72: d_in[9] B_wo  shape=(4096, 576) dtype=bfloat16
;   offset  80: d_out     shape=(32, 64, 1152) dtype=bfloat16 (2 bytes/elem)
;   offset  88: d_debug   256 bytes
;   offset  96: d_ws      292028416 bytes workspace
; Generated by gen/gen15.py (hand-written generator).
; @launch grid=(256,1,1) block=(512,1,1) lds=%d
.amdgcn_target "amdgcn-amd-amdhsa--gfx950"
.text
""" % (LDS_MAIN,)


def kd(name, vgpr, sgpr, accum):
    return """.amdhsa_kernel %s
  .amdhsa_next_free_vgpr %d
  .amdhsa_next_free_sgpr %d
  .amdhsa_accum_offset %d
  .amdhsa_group_segment_fixed_size 0
  .amdhsa_kernarg_size 104
  .amdhsa_user_sgpr_count 2
  .amdhsa_user_sgpr_kernarg_segment_ptr 1
  .amdhsa_system_sgpr_workgroup_id_x 1
.end_amdhsa_kernel
""" % (name, vgpr, sgpr, accum)


G_VX = 2
G_VW = 6
G_BA = 10
G_AA = 14
G_T0 = 16
G_T1 = 17
G_T2 = 18
G_T3 = 19
G_L16 = 20
G_CB = 23
G_WO = 24
G_AF = 48
G_BF = 64
G_KV = 96
G_ACC = 128
GLF = os.environ.get("GLF", "nt")
KVF = os.environ.get("KVF", "nt")
QSF = "sc1"
QLF = "sc1"
RING0 = 2


def gen_qproj_kernel(a):
    K = NAME + "_kernel"
    a.raw(".globl %s\n.p2align 8\n.type %s,@function\n%s:" % (K, K, K))
    a.scmp("s_cmp_ge_u32", "s2", 256)
    a.branch("s_cbranch_scc1", "Lm_done")
    diag_init(a)
    a.s_load(36, 8, 0, 0)
    a.s_load(44, 2, 0, 32)
    a.s_load(48, 8, 0, 40)
    a.s_load(56, 2, 0, 72)
    a.s_load(58, 2, 0, 96)
    a.valu("v_lshrrev_b32", "v1", 6, "v0")
    a.readfirstlane(3, 1)
    a.valu("v_lshlrev_b32", V(G_T3), 4, "v0")
    a.valu("v_and_b32", "v0", 63, "v0")
    a.valu("v_lshlrev_b32", V(G_L16), 4, "v0")
    a.salu("s_bfe_u32", "s4", "s2", 0x10002)
    a.salu("s_and_b32", "s5", "s2", 3)
    a.salu("s_bfe_u32", "s6", "s2", 0x20003)
    a.salu("s_lshr_b32", "s7", "s2", 5)
    a.salu("s_lshl_b32", "s26", "s5", 2)
    a.salu("s_add_u32", "s26", "s26", "s6")
    a.salu("s_and_b32", "s69", "s3", 3)
    a.valu("v_lshrrev_b32", V(G_T0), 3, "v0")
    a.salu("s_lshl_b32", "s27", "s69", 6)
    a.valu("v_add_u32", V(G_T0), "s27", V(G_T0))
    a.valu("v_mul_u32_u24", V(G_T0), 1152, V(G_T0))
    a.valu("v_and_b32", V(G_T1), 7, "v0")
    a.valu("v_lshrrev_b32", V(G_T2), 4, "v0")
    a.valu("v_xor_b32", V(G_T1), V(G_T1), V(G_T2))
    a.valu("v_lshl_add_u32", V(G_VX), V(G_T1), 4, V(G_T0))
    a.valu("v_add_u32", V(G_VX + 2), 2 * (8 * 1152 - 1024), V(G_VX))
    a.valu("v_xor_b32", V(G_T1), 4, V(G_T1))
    a.valu("v_lshl_add_u32", V(G_VX + 1), V(G_T1), 4, V(G_T0))
    a.valu("v_add_u32", V(G_VX + 1), 8 * 1152 - 1024, V(G_VX + 1))
    a.valu("v_add_u32", V(G_VX + 3), 2 * (8 * 1152 - 1024), V(G_VX + 1))
    a.valu("v_lshrrev_b32", V(G_T2), 5, "v0")
    a.salu("s_lshl_b32", "s27", "s69", 4)
    a.valu("v_add_u32", V(G_T0), "s27", V(G_T2))
    a.valu("v_lshlrev_b32", V(G_T0), 13, V(G_T0))
    a.valu("v_and_b32", V(G_T1), 31, "v0")
    a.valu("v_lshlrev_b32", V(G_T2), 2, V(G_T2))
    a.valu("v_xor_b32", V(G_T1), V(G_T1), V(G_T2))
    a.valu("v_lshl_add_u32", V(G_VW), V(G_T1), 4, V(G_T0))
    a.valu("v_add_u32", V(G_VW + 2), 2 * (2 * 8192 - 1024), V(G_VW))
    a.valu("v_xor_b32", V(G_T1), 8, V(G_T1))
    a.valu("v_lshl_add_u32", V(G_VW + 1), V(G_T1), 4, V(G_T0))
    a.valu("v_add_u32", V(G_VW + 1), 2 * 8192 - 1024, V(G_VW + 1))
    a.valu("v_add_u32", V(G_VW + 3), 2 * (2 * 8192 - 1024), V(G_VW + 1))
    a.salu("s_mov_b32", "s28", 0)
    a.salu("s_lshl_b32", "s29", "s26", 9)
    a.salu("s_lshl_b32", "s30", "s69", 13)
    a.salu("s_lshl_b32", "s69", "s69", 12)
    a.waitcnt(lgkm=0)
    a.scmp("s_cmp_eq_u32", "s4", 1)
    for i in range(10):
        a.salu("s_cselect_b32", S(36 + i), S(48 + i), S(36 + i))
    a.salu("s_mul_i32", "s27", "s7", 256 * 1152)
    a.salu("s_add_u32", "s36", "s36", "s27")
    a.salu("s_addc_u32", "s37", "s37", 0)
    a.srd(8, 36, 37, 256 * 1152)
    a.srd(12, 42, 43, 576 * 8192)

    def dma_stage():
        lw, ld = uid("Lgw"), uid("Lgd")
        a.scmp("s_cmp_ge_u32", "s3", 4)
        a.branch("s_cbranch_scc1", lw)
        for hh in range(2):
            a.salu("s_add_u32", "s31", "s30", 4096 * hh)
            a.salu("s_mov_b32", "m0", "s31")
            a.salu("s_add_u32", "s62", "s28", 32 * 1152 * hh)
            for ii in range(4):
                a.dma(G_VX + ii, 8, "s62", off=1024 * ii, flags=GLF)
        a.branch("s_branch", ld)
        a.label(lw)
        for hh in range(2):
            a.salu("s_add_u32", "s31", "s30", 32768 + 4096 * hh)
            a.salu("s_mov_b32", "m0", "s31")
            a.salu("s_add_u32", "s62", "s29", 8 * 8192 * hh)
            for ii in range(4):
                a.dma(G_VW + ii, 12, "s62", off=1024 * ii, flags=GLF)
        a.label(ld)
        a.salu("s_add_u32", "s28", "s28", 128)
        a.salu("s_add_u32", "s29", "s29", 64 * 8192)
        a.salu("s_xor_b32", "s30", "s30", 65536)

    dma_stage()
    a.salu("s_lshl_b32", "s32", "s5", 5)
    a.salu("s_lshr_b32", "s33", "s2", 3)
    a.salu("s_add_u32", "s32", "s32", "s33")
    a.salu("s_mul_i32", "s33", "s32", 36864)
    a.salu("s_add_u32", "s44", "s44", "s33")
    a.salu("s_addc_u32", "s45", "s45", 0)
    a.srd(16, 44, 45, 36864)
    a.salu("s_mov_b32", "s33", 0)
    for i in range(5):
        a.buf_load(G_WO + 4 * i, 4, G_T3, 16, "s33", flags="nt")
        if i < 4:
            a.salu("s_add_u32", "s33", "s33", 8192)
    a.salu("s_lshr_b32", "s33", "s2", 3)
    a.salu("s_lshl_b32", "s33", "s33", 4)
    a.salu("s_add_u32", "s33", "s33", "s26")
    a.salu("s_lshl_b32", "s33", "s33", 17)
    a.salu("s_add_u32", "s38", "s38", "s33")
    a.salu("s_addc_u32", "s39", "s39", 0)
    a.salu("s_add_u32", "s40", "s40", "s33")
    a.salu("s_addc_u32", "s41", "s41", 0)
    a.srd(72, 38, 39, 131072)
    a.srd(76, 40, 41, 131072)
    a.valu("v_lshrrev_b32", V(G_T2), 4, "v0")
    a.valu("v_and_b32", V(G_T0), 15, "v0")
    a.valu("v_lshl_add_u32", V(G_T1), V(G_T2), 8, "s69")
    for i in range(4):
        a.valu("v_add_u32", V(G_KV + i), 4 * i, V(G_T2))
        a.valu("v_xor_b32", V(G_KV + i), V(G_KV + i), V(G_T0))
        a.valu("v_lshl_add_u32", V(G_KV + i), V(G_KV + i), 4, V(G_T1))
    a.valu("v_lshlrev_b32", V(G_KV + 4), 2, V(G_T2))
    a.valu("v_xor_b32", V(G_KV + 4), V(G_KV + 4), V(G_T0))
    a.valu("v_lshl_add_u32", V(G_KV + 4), V(G_KV + 4), 4, V(G_T1))
    a.salu("s_and_b32", "s27", "s3", 1)
    a.salu("s_lshr_b32", "s35", "s3", 1)
    a.valu("v_and_b32", V(G_T0), 31, "v0")
    a.valu("v_bfe_u32", V(G_T1), "v0", 1, 3)
    a.valu("v_lshrrev_b32", V(G_T2), 5, "v0")
    a.valu("v_xor_b32", V(G_T1), V(G_T1), V(G_T2))
    a.valu("v_lshlrev_b32", V(G_T0), 7, V(G_T0))
    a.valu("v_lshl_add_u32", V(G_T0), V(G_T1), 4, V(G_T0))
    a.salu("s_lshl_b32", "s33", "s27", 14)
    a.valu("v_add_u32", V(G_BA), "s33", V(G_T0))
    for ks in range(1, 4):
        a.valu("v_xor_b32", V(G_BA + ks), ks << 5, V(G_BA))
    a.valu("v_bfe_u32", V(G_CB), "v0", 4, 1)
    a.valu("v_lshlrev_b32", V(G_CB), 5, V(G_CB))
    a.valu("v_and_b32", V(G_T0), 1, "v0")
    a.valu("v_lshl_add_u32", V(G_CB), V(G_T0), 4, V(G_CB))
    a.valu("v_bfe_u32", V(G_T0), "v0", 1, 1)
    a.valu("v_lshl_add_u32", V(G_CB), V(G_T0), 3, V(G_CB))
    a.valu("v_bfe_u32", V(G_T1), "v0", 2, 2)
    a.salu("s_lshl_b32", "s33", "s35", 7)
    a.valu("v_add_u32", V(G_T0), "s33", V(G_CB))
    a.valu("v_lshlrev_b32", V(G_AA), 6, V(G_T1))
    a.valu("v_xor_b32", V(G_T0), V(G_T0), V(G_AA))
    a.valu("v_lshl_add_u32", V(G_AA), V(G_T2), 3, V(G_T1))
    a.valu("v_lshl_add_u32", V(G_AA), V(G_AA), 9, V(G_T0))
    a.valu("v_add_u32", V(G_AA), 32768, V(G_AA))
    a.valu("v_xor_b32", V(G_AA + 1), 64, V(G_AA))
    for i in range(128):
        a.valu("v_mov_b32", V(G_ACC + i), 0)
    a.salu("s_mov_b32", "s33", 0)
    stamp(a, 0)
    a.waitcnt(vm=5)
    stamp(a, 1)

    a.label("Lg_loop")
    a.barrier()
    stamp(a, 2)

    def rd(ks):
        b = ks & 1
        for dtl in range(2):
            for t in range(2):
                a.ds_read("ds_read_b64_tr_b16", G_AF + 8 * b + 4 * dtl + 2 * t, 2, G_AA + dtl, off=(16 * ks + 4 * t) * 512)
        for qt in range(4):
            a.ds_read("ds_read_b128", G_BF + 16 * b + 4 * qt, 4, G_BA + ks, off=4096 * qt)

    rd(0)
    a.scmp("s_cmp_eq_u32", "s33", 8)
    a.branch("s_cbranch_scc1", "Lg_kv")
    dma_stage()
    a.branch("s_branch", "Lg_go")
    a.label("Lg_kv")
    a.scmp("s_cmp_lt_u32", "s3", 4)
    a.branch("s_cbranch_scc1", "Lg_go")
    a.salu("s_movk_i32", "s70", SLOT)
    for t in range(3):
        a.salu("s_add_u32", "s62", "s69", (RING0 + 2 + t) * SLOT)
        a.salu("s_mov_b32", "m0", "s62")
        for i in range(4):
            if t < 2:
                a.dma(G_KV + i, 72, "s70" if t else 0, off=1024 * i, flags=KVF)
            else:
                a.dma(G_KV + 4, 76, 0, off=1024 * i, flags=KVF)
    a.label("Lg_go")
    for ks in range(4):
        if ks < 3:
            rd(ks + 1)
            a.waitcnt(lgkm=8)
        else:
            a.waitcnt(lgkm=0)
        b = ks & 1
        for dtl in range(2):
            for qt in range(4):
                a.mfma32(G_ACC + 64 * dtl + 16 * qt, G_AF + 8 * b + 4 * dtl, G_BF + 16 * b + 4 * qt)
    for ks in range(4):
        a.valu("v_xor_b32", V(G_BA + ks), 65536, V(G_BA + ks))
    for dtl in range(2):
        a.valu("v_xor_b32", V(G_AA + dtl), 65536, V(G_AA + dtl))
    a.salu("s_add_u32", "s33", "s33", 1)
    stamp(a, 3)
    a.scmp("s_cmp_eq_u32", "s33", 9)
    a.branch("s_cbranch_scc1", "Lg_last")
    a.waitcnt(vm=0)
    stamp(a, 4)
    a.branch("s_branch", "Lg_loop")
    a.label("Lg_last")

    a.barrier()
    for i in range(5):
        a.ds_write("ds_write_b128", G_T3, G_WO + 4 * i, 4, off=i * 8192)
    a.salu("s_add_u32", "s60", "s58", CNT_OFF)
    a.salu("s_addc_u32", "s61", "s59", 0)
    a.srd(16, 60, 61, 64 * 128)
    a.salu("s_lshl_b32", "s28", "s4", 5)
    a.salu("s_lshr_b32", "s29", "s2", 3)
    a.salu("s_add_u32", "s28", "s28", "s29")
    a.salu("s_lshl_b32", "s28", "s28", 7)
    a.salu("s_or_b32", "s29", "s3", "s5")
    a.scmp("s_cmp_lg_u32", "s29", 0)
    a.salu("s_cselect_b32", "s28", 0x10000000, "s28")
    a.valu("v_and_b32", V(G_T0), 31, "v0")
    a.valu("v_lshlrev_b32", V(G_T0), 2, V(G_T0))
    a.valu("v_mov_b32", V(G_T1), 0)
    a.buf_store(G_T1, 1, G_T0, 16, "s28", flags="sc1")
    a.srd(12, 58, 59, WOP_SZ)
    a.valu("v_lshrrev_b32", V(G_T2), 5, "v0")
    a.valu("v_bfe_u32", V(G_T1), "v0", 2, 2)
    a.valu("v_lshl_add_u32", V(G_T0), V(G_T2), 2, V(G_T1))
    a.valu("v_mul_u32_u24", V(G_T0), 1152, V(G_T0))
    a.valu("v_add_u32", V(G_T0), V(G_T0), V(G_CB))
    a.salu("s_mul_i32", "s28", "s27", 16 * 1152)
    a.salu("s_add_u32", "s29", "s35", 1)
    a.salu("s_lshr_b32", "s29", "s29", 1)
    a.salu("s_lshl_b32", "s30", "s35", 2)
    a.salu("s_add_u32", "s29", "s29", "s30")
    a.salu("s_lshl_b32", "s29", "s29", 6)
    a.salu("s_add_u32", "s29", "s29", "s28")
    a.valu("v_add_u32", V(G_T1), "s29", V(G_T0))
    a.salu("s_lshr_b32", "s29", "s35", 1)
    a.salu("s_mul_i32", "s29", "s29", 9 * 64)
    a.salu("s_add_u32", "s29", "s29", 256)
    a.salu("s_add_u32", "s29", "s29", "s28")
    a.valu("v_add_u32", V(G_T2), "s29", V(G_T0))
    a.salu("s_lshl_b32", "s28", "s4", 2)
    a.salu("s_add_u32", "s28", "s28", "s35")
    a.salu("s_lshl_b32", "s28", "s28", 7)
    a.salu("s_add_u32", "s28", "s28", "s32")
    a.salu("s_mul_i32", "s28", "s28", 10240)
    a.salu("s_mul_i32", "s29", "s27", 5120)
    a.salu("s_add_u32", "s28", "s28", "s29")
    a.salu("s_add_u32", "s29", "s28", 4096)
    a.waitcnt(lgkm=0)
    a.barrier()
    for ct in range(5):
        for t in range(2):
            if ct < 4:
                a.ds_read("ds_read_b64_tr_b16", G_AF + 4 * ct + 2 * t, 2, G_T1, off=8 * t * 1152 + 64 * ct)
            else:
                a.ds_read("ds_read_b64_tr_b16", G_AF + 4 * ct + 2 * t, 2, G_T2, off=8 * t * 1152)
    for ct in range(5):
        a.waitcnt(lgkm=8 - 2 * ct)
        a.buf_store(G_AF + 4 * ct, 4, G_L16, 12, "s28" if ct < 4 else "s29", off=(ct & 3) * 1024, flags=QSF)
    stamp(a, 6)
    a.salu("s_lshl_b32", "s28", "s4", 5)
    a.salu("s_lshl_b32", "s29", "s7", 2)
    a.salu("s_add_u32", "s28", "s28", "s29")
    a.salu("s_lshl_b32", "s29", "s27", 1)
    a.salu("s_add_u32", "s28", "s28", "s29")
    a.salu("s_lshl_b32", "s28", "s28", 2)
    a.salu("s_add_u32", "s28", "s28", "s5")
    a.salu("s_lshl_b32", "s28", "s28", 17)
    a.salu("s_lshl_b32", "s29", "s6", 15)
    a.salu("s_add_u32", "s28", "s28", "s29")
    a.salu("s_lshr_b32", "s29", "s35", 1)
    a.salu("s_lshl_b32", "s29", "s29", 14)
    a.salu("s_add_u32", "s28", "s28", "s29")
    a.salu("s_and_b32", "s29", "s35", 1)
    a.salu("s_lshl_b32", "s29", "s29", 12)
    a.salu("s_add_u32", "s28", "s28", "s29")
    a.salu("s_add_u32", "s60", "s58", Q_OFF)
    a.salu("s_addc_u32", "s61", "s59", 0)
    a.srd(8, 60, 61, Q_SZ)
    a.salu("s_mov_b32", "s31", f32bits(SCALE))
    for qt in range(4):
        a.salu("s_add_u32", "s29", "s28", (qt >> 1) * 4 * 131072 + (qt & 1) * 8192)
        a.salu("s_lshl_b32", "s30", "s27", 1)
        a.salu("s_add_u32", "s30", "s30", qt >> 1)
        a.scmp("s_cmp_eq_u32", "s30", "s6")
        a.salu("s_cselect_b32", "s29", 0x10000000, "s29")
        for dtl in range(2):
            for hf in range(2):
                b = G_ACC + 64 * dtl + 16 * qt + 8 * hf
                for i in range(8):
                    a.valu("v_mul_f32", V(b + i), "s31", V(b + i))
                for i in range(0, 8, 2):
                    a.valu("v_cvt_pk_bf16_f32", V(b + i // 2), V(b + i), V(b + i + 1))
                a.buf_store(b, 4, G_L16, 8, "s29", off=dtl * 2048 + hf * 1024, flags=QSF)
    stamp(a, 5)
    if DIAG:
        diag_dump(a, G_T0, 58, 1 << 20)


class Queue:
    def __init__(self, a, kind):
        self.a = a
        self.kind = kind
        self.q = []

    def push(self, tag):
        self.q.append(tag)

    def wait(self, tag):
        if tag not in self.q:
            return
        i = len(self.q) - 1 - self.q[::-1].index(tag)
        n = len(self.q) - 1 - i
        if self.kind == "vm":
            self.a.waitcnt(vm=n)
        else:
            self.a.waitcnt(lgkm=min(n, 15))
        self.q = self.q[i + 1:]

    def drain(self):
        if self.kind == "vm":
            self.a.waitcnt(vm=0)
        else:
            self.a.waitcnt(lgkm=0)
        self.q = []


_uid = [0]


def uid(prefix):
    _uid[0] += 1
    return "%s_%d" % (prefix, _uid[0])


def lds_post(a, vaddr, vcnt, inc=1):
    a.valu("v_add_u32", V(vcnt), inc, V(vcnt))
    a.salu("s_mov_b64", "exec", 1)
    a.ds_write("ds_write_b32", vaddr, vcnt, 1)
    a.salu("s_mov_b64", "exec", -1)


def lds_min4(a, v4, stmp):
    a.valu("v_min3_u32", V(v4), V(v4), V(v4 + 1), V(v4 + 2))
    a.valu("v_min_u32", V(v4), V(v4), V(v4 + 3))
    a.readfirstlane(stmp, v4)


def lds_check(a, vflg, off, v4, stmp, sneed, scnt, tail):
    lspin, lback = uid("Lspin"), uid("Lback")

    def emit(a):
        a.label(lspin)
        a.salu("s_mov_b32", S(scnt), 0)
        lp = lspin + "_l"
        a.label(lp)
        a.misc("s_sleep 1")
        a.ds_read("ds_read_b128", v4, 4, vflg, off=off)
        a.waitcnt(lgkm=0)
        lds_min4(a, v4, stmp)
        a.scmp("s_cmp_ge_u32", S(stmp), S(sneed))
        a.branch("s_cbranch_scc1", lback)
        a.salu("s_add_u32", S(scnt), S(scnt), 1)
        a.scmp("s_cmp_lt_u32", S(scnt), SPIN_CAP)
        a.branch("s_cbranch_scc1", lp)
        a.branch("s_branch", lback)

    tail.append(emit)
    lds_min4(a, v4, stmp)
    a.scmp("s_cmp_lt_u32", S(stmp), S(sneed))
    a.lines.append("    s_cbranch_scc1 %s" % lspin)
    a.n_ins += 1
    a.lines.append(lback + ":")


def gen_main(a):
    a.comment("================ phase 2: attention + output projection ================")
    a.s_load(36, 4, 0, 0)
    a.s_load(40, 2, 0, 16)
    a.s_load(44, 4, 0, 40)
    a.s_load(48, 2, 0, 56)
    a.s_load(52, 4, 0, 80)
    a.s_load(56, 2, 0, 96)
    a.valu("v_and_b32", "v1", 31, "v0")
    a.valu("v_lshlrev_b32", "v1", 2, "v1")
    a.valu("v_add_u32", "v1", FLG, "v1")
    a.valu("v_mov_b32", "v2", 0)
    a.ds_write("ds_write_b32", 1, 2, 1)
    a.salu("s_bfe_u32", "s4", "s2", 0x10002)
    a.salu("s_and_b32", "s5", "s2", 3)
    a.salu("s_lshr_b32", "s6", "s2", 3)
    a.salu("s_lshl_b32", "s7", "s4", 5)
    a.salu("s_add_u32", "s7", "s7", "s6")
    a.waitcnt(lgkm=0)
    a.barrier()
    a.salu("s_bfe_u32", "s58", "s6", 0x10001)
    a.salu("s_and_b32", "s59", "s3", 1)
    a.scmp("s_cmp_lg_u32", "s58", "s59")
    a.branch("s_cbranch_scc1", "Lm_noq")
    a.salu("s_lshr_b32", "s59", "s3", 2)
    a.salu("s_lshl_b32", "s59", "s59", 14)
    a.salu("s_bfe_u32", "s58", "s3", 0x10001)
    a.salu("s_lshl_b32", "s58", "s58", 12)
    a.salu("s_add_u32", "s59", "s59", "s58")
    a.salu("s_add_u32", "s59", "s59", RING0 * SLOT)
    a.valu("v_lshl_add_u32", "v1", "v0", 4, "s59")
    a.op("s_bitcmp1_b32 s6, 0", "salu", [], ["s6"])
    a.branch("s_cbranch_scc1", "Lm_q1")
    for half in range(2):
        if half:
            a.branch("s_branch", "Lm_q2")
            a.label("Lm_q1")
        for qh in range(2):
            for dtl in range(2):
                for hf in range(2):
                    b = G_ACC + 64 * dtl + 16 * (2 * half + qh) + 8 * hf
                    a.ds_write("ds_write_b128", 1, b, 4, off=qh * 8192 + dtl * 2048 + hf * 1024)
    a.label("Lm_q2")
    a.waitcnt(lgkm=0)
    a.valu("v_mov_b32", "v1", FLG)
    a.valu("v_mov_b32", "v2", 1)
    a.salu("s_mov_b64", "exec", 1)
    a.op("ds_add_u32 v1, v2 offset:%d" % F_QGO, "ds", [], ["v1", "v2"])
    a.salu("s_mov_b64", "exec", -1)
    a.label("Lm_noq")
    a.scmp("s_cmp_eq_u32", "s4", 1)
    for i in range(6):
        a.salu("s_cselect_b32", S(36 + i), S(44 + i), S(36 + i))
    a.salu("s_lshl_b32", "s58", "s7", 7)
    a.salu("s_add_u32", "s58", "s58", CNT_OFF)
    a.salu("s_add_u32", "s24", "s56", "s58")
    a.salu("s_addc_u32", "s25", "s57", 0)
    a.salu("s_lshl_b32", "s58", "s7", 2)
    a.salu("s_add_u32", "s58", "s58", "s5")
    a.salu("s_lshl_b32", "s59", "s58", 17)
    a.salu("s_add_u32", "s59", "s59", Q_OFF)
    a.salu("s_add_u32", "s60", "s56", "s59")
    a.salu("s_addc_u32", "s61", "s57", 0)
    a.srd(16, 60, 61, 131072)
    a.scmp("s_cmp_ge_u32", "s3", 4)
    a.branch("s_cbranch_scc1", "Lp_start")
    gen_A(a)
    gen_P(a)
    a.label("Lm_done")
    a.raw("    s_endpgm")


def signal_phase1(a, vflg, t0, t1, t2, t3, st, st2):
    lsk = uid("Lsg")
    a.valu("v_mov_b32", V(t1), 1)
    a.salu("s_mov_b64", "exec", 1)
    a.op("ds_add_rtn_u32 %s, %s, %s offset:%d" % (V(t0), V(vflg), V(t1), F_SC), "ds", [V(t0)], [V(vflg), V(t1)])
    a.salu("s_mov_b64", "exec", -1)
    a.waitcnt(lgkm=0)
    a.readfirstlane(st, t0)
    a.scmp("s_cmp_lg_u32", S(st), 7)
    a.branch("s_cbranch_scc1", lsk)
    a.salu("s_lshl_b32", S(st), "s4", 5)
    a.salu("s_lshl_b32", S(st2), "s5", 3)
    a.salu("s_add_u32", S(st), S(st), S(st2))
    a.salu("s_lshr_b32", S(st2), "s6", 2)
    a.salu("s_add_u32", S(st), S(st), S(st2))
    a.salu("s_lshl_b32", S(st), S(st), 2)
    a.valu("v_mov_b32", V(t0), S(st))
    a.salu("s_lshl_b32", S(st), "s4", 2)
    a.salu("s_add_u32", S(st), S(st), "s5")
    a.salu("s_lshl_b32", S(st), S(st), 2)
    a.valu("v_mov_b32", V(t2), S(st))
    a.valu("v_mov_b32", V(t3), 0x10000)
    a.salu("s_mov_b64", "exec", 1)
    a.op("global_atomic_add %s, %s, s[54:55]" % (V(t0), V(t1)), "vmem", [], [V(t0), V(t1), "s54", "s55"])
    a.op("global_atomic_add %s, %s, s[54:55]" % (V(t2), V(t3)), "vmem", [], [V(t2), V(t3), "s54", "s55"])
    a.salu("s_mov_b64", "exec", -1)
    a.label(lsk)


A_KB = 2
A_VB = 3
A_QA = 4
A_VO = 5
A_M = 6
A_L0 = 7
A_L1 = 8
A_FLG = 9
A_ONE = 10
A_CNT = 11
A_FW = 12
A_AD = 14
A_T0 = 22
A_T1 = 23
A_T2 = 24
A_T3 = 25
A_CL = 26
A_NM = 32
A_Q = 48
A_O = 80
A_S = 144
A_F = 208
A_NF = 8
SA_O = 20
SA_RS = 29
SA_U = 30
SA_OO = 31
SA_C = 32
SA_NL = 33
SA_T = 34
SA_SP = 63
SA_T2 = 64
SA_THR = 66
KVF = os.environ.get("KVF", "nt")
OSF = os.environ.get("OSF", "sc1")
WOF = "sc1"
OLF = os.environ.get("OLF", "sc1")
BURST = int(os.environ.get("BURST", "3"))
NTILE = 72


def a_adv(a):
    a.salu("s_add_u32", S(SA_RS), S(SA_RS), SLOT)
    a.scmp("s_cmp_ge_u32", S(SA_RS), NSLOT * SLOT)
    a.salu("s_cselect_b32", S(SA_RS), 0, S(SA_RS))


def a_top(a, lq, tail):
    stamp(a, 3)
    lq.drain()
    lds_check(a, A_FLG, F_CL, A_CL, SA_T, SA_NL, SA_SP, tail)
    stamp(a, 0)
    a.salu("s_add_u32", S(SA_NL), S(SA_NL), 1)


def a_end(a, lq, inc=1):
    lds_post(a, A_FW, A_CNT, inc)
    lq.push("cdadd")
    a.ds_read("ds_read_b128", A_CL, 4, A_FLG, off=F_CL)
    lq.push("clread")
    a_adv(a)


def a_qstep(a, tail):
    lq = Queue(a, "lgkm")
    lq.push("clread")
    a.salu("s_add_u32", S(SA_NL), S(SA_NL), 1)
    a_top(a, lq, tail)
    a.salu("s_mov_b32", S(SA_T2), S(SA_RS))
    a_adv(a)
    a.scmp("s_cmp_ge_u32", "s3", 2)
    a.salu("s_cselect_b32", S(SA_T2), S(SA_RS), S(SA_T2))
    a.valu("v_add_u32", V(A_AD), S(SA_T2), V(A_QA))
    for s in range(8):
        a.ds_read("ds_read_b128", A_Q + 4 * s, 4, A_AD, off=1024 * s)
    a_unit_init(a)
    a.waitcnt(lgkm=0)
    a_end(a, lq, 2)


def a_step(a, pos, tail):
    lq = Queue(a, "lgkm")
    lq.push("clread")
    a_top(a, lq, tail)
    is_k = pos < 2
    hf = pos & 1
    if is_k:
        a.valu("v_add_u32", V(A_AD), S(SA_RS), V(A_KB))
        for s in range(1, 8):
            a.valu("v_xor_b32", V(A_AD + s), s << 5, V(A_AD))
        seq = [(s, kt) for s in range(8) for kt in range(2)]
    else:
        a.valu("v_add_u32", V(A_AD), S(SA_RS), V(A_VB))
        for dt in range(1, 4):
            a.valu("v_xor_b32", V(A_AD + dt), dt << 6, V(A_AD))
        seq = [(kk, dt) for kk in range(4) for dt in range(4)]
    n = 16
    depth = A_NF - 1

    def rd(i):
        f = A_F + 4 * (i % A_NF)
        if is_k:
            s, kt = seq[i]
            a.ds_read("ds_read_b128", f, 4, A_AD + s, off=kt * 8192)
            lq.push(("f", i))
        else:
            kk, dt = seq[i]
            for t in range(2):
                a.ds_read("ds_read_b64_tr_b16", f + 2 * t, 2, A_AD + dt, off=(16 * kk + 8 * t) * 256)
                lq.push(("f", i) if t else ("f0", i))

    if "nocomp" in EXP:
        a_end(a, lq)
        return
    for i in range(depth):
        rd(i)
    if pos == 2:
        a_softmax(a, lambda: None)
    ended = False
    for i in range(n):
        lq.wait(("f", i))
        if not ended and not any(isinstance(x, tuple) for x in lq.q) and i + depth >= n:
            a_end(a, lq)
            ended = True
        f = A_F + 4 * (i % A_NF)
        if is_k:
            s, kt = seq[i]
            d = A_S + 16 * (2 * hf + kt)
            a.mfma32(d, f, A_Q + 4 * s, A_NM if s == 0 else None)
        else:
            kk, dt = seq[i]
            a.mfma32(A_O + 16 * dt, f, A_S + 16 * hf + 4 * kk)
        if i + depth < n:
            rd(i + depth)
        if i == n - 4 and not ended:
            lq.wait(("f", n - 1))
            a_end(a, lq)
            ended = True
    assert ended
    if pos == 0:
        lskip = uid("Lnos")
        a.salu("s_or_b32", S(SA_T), S(SA_C), S(SA_U))
        a.scmp("s_cmp_lg_u32", S(SA_T), 0)
        a.branch("s_cbranch_scc1", lskip)
        a.waitcnt(vm=0)
        signal_phase1(a, A_FLG, A_T0, A_T1, A_T2, A_T3, SA_T, SA_T2)
        a.label(lskip)


def a_softmax(a, mid):
    S0 = A_S
    a.valu("v_max3_f32", V(A_T0), V(S0), V(S0 + 1), V(S0 + 2))
    a.valu("v_max3_f32", V(A_T1), V(S0 + 3), V(S0 + 4), V(S0 + 5))
    i = 6
    tog = 0
    while i + 1 < 64:
        t = A_T0 if tog == 0 else A_T1
        a.valu("v_max3_f32", V(t), V(t), V(S0 + i), V(S0 + i + 1))
        i += 2
        tog ^= 1
    a.valu("v_max_f32", V(A_T0), V(A_T0), V(A_T1))
    a.valu("v_mov_b32", V(A_T1), V(A_T0))
    a.permlane32_swap(A_T0, A_T1)
    a.valu("v_max_f32", V(A_T0), V(A_T0), V(A_T1))
    lfast = uid("Lfast")
    a.valu("v_cmp_lt_f32", "vcc", S(SA_THR), V(A_T0), extra_w=["vcc"])
    a.branch("s_cbranch_vccz", lfast)
    a.valu("v_max_f32", V(A_T1), S(SA_THR), V(A_T0))
    a.valu("v_max_f32", V(A_T2), 0, V(A_T0))
    a.scmp("s_cmp_eq_u32", S(SA_C), 0)
    a.salu("s_cselect_b64", "vcc", -1, 0)
    a.valu("v_cndmask_b32", V(A_T0), V(A_T2), V(A_T0), "vcc")
    a.valu("v_sub_f32", V(A_T1), 0, V(A_T0))
    a.valu("v_exp_f32", V(A_T1), V(A_T1))
    a.valu("v_cndmask_b32", V(A_T1), V(A_T1), 0, "vcc", mods="")
    a.valu("v_add_f32", V(A_M), V(A_M), V(A_T0))
    a.valu("v_mul_f32", V(A_L0), V(A_L0), V(A_T1))
    a.valu("v_mul_f32", V(A_L1), V(A_L1), V(A_T1))
    for i in range(64):
        a.valu("v_sub_f32", V(S0 + i), V(S0 + i), V(A_T0))
    for i in range(64):
        a.valu("v_mul_f32", V(A_O + i), V(A_O + i), V(A_T1))
    a.valu("v_sub_f32", V(A_NM), 0, V(A_M))
    for i in range(1, 16):
        a.valu("v_mov_b32", V(A_NM + i), V(A_NM))
    a.salu("s_mov_b32", S(SA_THR), f32bits(THRESH))
    a.label(lfast)
    mid()
    for i in range(0, 64, 2):
        a.valu("v_exp_f32", V(S0 + i), V(S0 + i))
        a.valu("v_exp_f32", V(S0 + i + 1), V(S0 + i + 1))
        if i >= 2:
            k = i - 2
            a.valu("v_add_f32", V(A_L0), V(A_L0), V(S0 + k))
            a.valu("v_add_f32", V(A_L1), V(A_L1), V(S0 + k + 1))
            a.valu("v_cvt_pk_bf16_f32", V(S0 + k // 2), V(S0 + k), V(S0 + k + 1))
    a.valu("v_add_f32", V(A_L0), V(A_L0), V(S0 + 62))
    a.valu("v_add_f32", V(A_L1), V(A_L1), V(S0 + 63))
    a.valu("v_cvt_pk_bf16_f32", V(S0 + 31), V(S0 + 62), V(S0 + 63))
    if "ast" in EXP:
        stamp(a, 7)


def a_unit_init(a):
    a.valu("v_mov_b32", V(A_M), 0)
    for i in range(16):
        a.valu("v_mov_b32", V(A_NM + i), 0)
    a.salu("s_mov_b32", S(SA_THR), 0xFF800000)


def gen_A(a):
    tail = []
    diag_init(a)
    a.valu("v_lshrrev_b32", "v1", 4, "v0")
    a.valu("v_and_b32", V(A_T0), 15, "v0")
    a.valu("v_lshrrev_b32", V(A_T2), 5, "v0")
    a.valu("v_xor_b32", V(A_T3), V(A_T2), V(A_T0))
    a.valu("v_and_b32", V(A_KB), 31, "v0")
    a.valu("v_lshlrev_b32", V(A_KB), 8, V(A_KB))
    a.valu("v_lshl_add_u32", V(A_KB), V(A_T3), 4, V(A_KB))
    a.valu("v_bfe_u32", V(A_T3), "v0", 2, 2)
    a.valu("v_lshl_add_u32", V(A_VB), V(A_T2), 2, V(A_T3))
    a.valu("v_lshlrev_b32", V(A_VB), 8, V(A_VB))
    a.valu("v_lshl_add_u32", V(A_VB), V(A_T3), 6, V(A_VB))
    a.valu("v_and_b32", V(A_T3), 1, "v1")
    a.valu("v_lshl_add_u32", V(A_VB), V(A_T3), 5, V(A_VB))
    a.valu("v_and_b32", V(A_AD), 3, "v0")
    a.valu("v_lshl_add_u32", V(A_VB), V(A_AD), 3, V(A_VB))
    a.salu("s_and_b32", "s60", "s3", 1)
    a.salu("s_lshl_b32", "s59", "s60", 13)
    a.valu("v_lshl_add_u32", V(A_QA), "v0", 4, "s59")
    a.salu("s_lshr_b32", "s59", "s3", 1)
    a.salu("s_lshl_b32", "s59", "s59", 14)
    a.salu("s_lshl_b32", "s60", "s60", 10)
    a.salu("s_add_u32", "s59", "s59", "s60")
    a.salu("s_add_u32", "s59", "s59", OBUF)
    a.valu("v_lshl_add_u32", V(A_VO), "v0", 4, "s59")
    a.valu("v_mov_b32", V(A_FLG), FLG)
    for i in range(64):
        a.valu("v_mov_b32", V(A_O + i), 0)
    a.valu("v_mov_b32", V(A_L0), 0)
    a.valu("v_mov_b32", V(A_L1), 0)
    a.valu("v_mov_b32", V(A_ONE), 0)
    a.valu("v_mov_b32", V(A_CNT), 0)
    a.salu("s_lshl_b32", "s59", "s3", 2)
    a.salu("s_add_u32", "s59", "s59", FLG + F_CD)
    a.valu("v_mov_b32", V(A_FW), "s59")
    a.salu("s_mov_b32", S(SA_RS), RING0 * SLOT)
    a.salu("s_mov_b32", S(SA_U), 0)
    a.salu("s_mov_b32", S(SA_OO), 0)
    a.ds_read("ds_read_b128", A_CL, 4, A_FLG, off=F_CL)
    a.salu("s_mov_b32", S(SA_NL), 1)
    a.misc("s_setprio 2")
    stamp(a, 4)

    a.label("La_unit")
    a_qstep(a, tail)
    a.salu("s_mov_b32", S(SA_C), 0)
    a.label("La_chunk")
    for pos in range(4):
        a.comment("---- A step pos %d ----" % pos)
        a_step(a, pos, tail)
    a.salu("s_add_u32", S(SA_C), S(SA_C), 1)
    a.scmp("s_cmp_lt_u32", S(SA_C), 4)
    a.branch("s_cbranch_scc1", "La_chunk")
    a.waitcnt(lgkm=0)
    a.ds_read("ds_read_b128", A_AD, 4, A_FLG, off=F_OF)
    a.valu("v_add_f32", V(A_T0), V(A_L0), V(A_L1))
    a.valu("v_mov_b32", V(A_T1), V(A_T0))
    a.permlane32_swap(A_T0, A_T1)
    a.valu("v_add_f32", V(A_T0), V(A_T0), V(A_T1))
    a.valu("v_rcp_f32", V(A_T0), V(A_T0))
    for dt in range(4):
        for kk in range(2):
            b = A_O + 16 * dt + 8 * kk
            d = A_S + 8 * dt + 4 * kk
            for i in range(8):
                a.valu("v_mul_f32", V(b + i), V(b + i), V(A_T0))
            for i in range(0, 8, 2):
                a.valu("v_cvt_pk_bf16_f32", V(d + i // 2), V(b + i), V(b + i + 1))
    stamp(a, 3)
    a.waitcnt(lgkm=0)
    lds_check(a, A_FLG, F_OF, A_AD, SA_T, SA_U, SA_SP, tail)
    stamp(a, 1)
    for f in range(8):
        a.ds_write("ds_write_b128", A_VO, A_S + 4 * f, 4, off=f * 2048)
    a.waitcnt(lgkm=0)
    a.valu("v_add_u32", V(A_T2), F_OW - F_CD, V(A_FW))
    lds_post(a, A_T2, A_ONE)
    a.salu("s_add_u32", S(SA_U), S(SA_U), 1)
    a.scmp("s_cmp_lt_u32", S(SA_U), 4)
    a.branch("s_cbranch_scc1", "La_unit")
    a.waitcnt(lgkm=0)
    stamp(a, 5)
    diag_dump(a, A_T2)
    a.branch("s_branch", "Lm_done")
    for t in tail:
        t(a)


P_FW = 0
P_L16 = 1
P_VDK = 2
P_VDV = 6
P_VDQ = 7
P_ACC = 8
P_OF = 152
P_WF = 168
P_NW = 19
P_FLG = 244
P_CNT = 245
P_OCNT = 246
P_OA = 247
P_F = 248
P_T0 = 248
P_T1 = 249
P_T2 = 250
P_T3 = 251
SP_K = 8
SP_V = 12
SP_Q = 16
SP_X = 20
SP_WO = 28
SP_OUT = 32
SP_YU = 26
SP_W = 27
SP_A = 62
SP_B = 63
SP_T = 64
SP_T2 = 65
SP_PEND = 66
SP_SPIN = 67
SP_I = 68
SP_TN = 69
SP_SH = 70
SP_KN = 71
SP_VN = 72
SP_QN = 73
SP_WS = 74
SP_WLIM = 75
SP_PI = 76
SP_YT = 77
SP_CD = 78
SP_U0 = 79
SP_QOK = 48
YPRIO = int(os.environ.get("YPRIO", "3"))
INFL = int(os.environ.get("INFL", "3"))
PHI = int(os.environ.get("PHI", "4"))


def p_issue_tile(a, with_q=True):
    lk, lv, ld = uid("Ltk"), uid("Ltv"), uid("Ltd")
    if with_q:
        a.scmp("s_cmp_ge_u32", S(SP_PI), 2)
        a.branch("s_cbranch_scc1", lk)
        lq = uid("Ltq")
        a.scmp("s_cmp_lg_u32", S(SP_QOK), 0)
        a.branch("s_cbranch_scc1", lq)
        a.salu("s_lshl_b32", S(SP_T), "s4", 5)
        a.salu("s_lshl_b32", S(SP_T2), "s5", 3)
        a.salu("s_add_u32", S(SP_T), S(SP_T), S(SP_T2))
        a.salu("s_lshr_b32", S(SP_T2), "s6", 2)
        a.salu("s_add_u32", S(SP_T), S(SP_T), S(SP_T2))
        a.salu("s_lshl_b32", S(SP_T), S(SP_T), 2)
        a.valu("v_mov_b32", V(P_T0), S(SP_T))
        lp = uid("Ltp")
        a.label(lp)
        a.op("global_load_dword %s, %s, s[54:55] sc1" % (V(P_T1), V(P_T0)), "vmem", [V(P_T1)], [V(P_T0), "s54", "s55"])
        a.waitcnt(vm=0)
        a.readfirstlane(SP_T, P_T1)
        a.salu("s_and_b32", S(SP_T), S(SP_T), 255)
        a.salu("s_add_u32", S(SP_QOK), S(SP_QOK), 1)
        a.scmp("s_cmp_ge_u32", S(SP_T), 4)
        a.branch("s_cbranch_scc1", lq)
        a.misc("s_sleep 8")
        a.scmp("s_cmp_lt_u32", S(SP_QOK), SPIN_CAP)
        a.branch("s_cbranch_scc1", lp)
        a.label(lq)
        a.salu("s_mov_b32", "m0", S(SP_WS))
        for i in range(4):
            a.dma(P_VDQ, SP_Q, S(SP_QN), off=1024 * i, flags=QLF)
        a.salu("s_add_u32", S(SP_QN), S(SP_QN), SLOT)
        a.salu("s_and_b32", S(SP_QN), S(SP_QN), 131071)
        a.branch("s_branch", ld)
        a.label(lk)
    a.salu("s_mov_b32", "m0", S(SP_WS))
    a.op("s_bitcmp1_b32 %s, 1" % S(SP_PI), "salu", [], [S(SP_PI)])
    a.branch("s_cbranch_scc0", lv)
    for i in range(4):
        a.dma(P_VDK + i, SP_K, S(SP_KN), off=1024 * i, flags=KVF)
    a.salu("s_add_u32", S(SP_KN), S(SP_KN), SLOT)
    a.salu("s_and_b32", S(SP_KN), S(SP_KN), 524287)
    a.branch("s_branch", ld)
    a.label(lv)
    for i in range(4):
        a.dma(P_VDV, SP_V, S(SP_VN), off=1024 * i, flags=KVF)
    a.salu("s_add_u32", S(SP_VN), S(SP_VN), SLOT)
    a.salu("s_and_b32", S(SP_VN), S(SP_VN), 524287)
    a.label(ld)
    a.salu("s_add_u32", S(SP_WS), S(SP_WS), SLOT)
    a.scmp("s_cmp_ge_u32", S(SP_WS), S(SP_WLIM))
    a.salu("s_cselect_b32", S(SP_T), NSLOT * SLOT, 0)
    a.salu("s_sub_u32", S(SP_WS), S(SP_WS), S(SP_T))
    a.salu("s_add_u32", S(SP_PI), S(SP_PI), 1)
    a.scmp("s_cmp_eq_u32", S(SP_PI), 18)
    a.salu("s_cselect_b32", S(SP_PI), 0, S(SP_PI))
    a.salu("s_add_u32", S(SP_TN), S(SP_TN), 1)


def p_retire_one(a):
    ld = uid("Lrd")
    labs = [uid("Lr") for _ in range(INFL)]
    for k in range(INFL, 1, -1):
        a.scmp("s_cmp_lg_u32", S(SP_PEND), k)
        a.branch("s_cbranch_scc1", labs[k - 1])
        a.waitcnt(vm=4 * (k - 1))
        a.branch("s_branch", ld)
        a.label(labs[k - 1])
    a.waitcnt(vm=0)
    a.label(ld)
    lds_post(a, P_FW, P_CNT)
    a.salu("s_sub_u32", S(SP_PEND), S(SP_PEND), 1)


def gen_y(a):
    vq = Queue(a, "vm")
    lq = Queue(a, "lgkm")
    a.salu("s_add_u32", S(SP_A), S(SP_YU), S(SP_U0))
    a.salu("s_and_b32", S(SP_A), S(SP_A), 3)
    a.salu("s_mul_i32", S(SP_A), S(SP_A), 81920)

    def wload(i):
        a.buf_load(P_WF + 4 * (i % P_NW), 4, P_L16, SP_WO, S(SP_A), off=(i & 3) * 1024, flags=WOF)
        vq.push(("w", i))
        if (i & 3) == 3:
            a.salu("s_add_u32", S(SP_A), S(SP_A), 4096)

    def oread(ks):
        for qh in range(2):
            a.ds_read("ds_read_b128", P_OF + 8 * (ks & 1) + 4 * qh, 4, P_OA, off=ks * 2048 + qh * 1024)
            lq.push(("o", ks, qh))

    for i in range(P_NW):
        wload(i)
    oread(0)
    for ks in range(16):
        if ks < 15:
            oread(ks + 1)
        lq.wait(("o", ks, 1))
        if ks == 15:
            a.valu("v_add_u32", V(P_T0), F_OF - F_CL, V(P_FW))
            lds_post(a, P_T0, P_OCNT)
        o0 = P_OF + 8 * (ks & 1)
        o1 = o0 + 4
        for ct in range(5):
            i = 5 * ks + ct
            vq.wait(("w", i))
            w = P_WF + 4 * (i % P_NW)
            if ct < 4:
                a.mfma32(P_ACC + 32 * ct, w, o0)
                a.mfma32(P_ACC + 32 * ct + 16, w, o1)
            else:
                l1, l2 = uid("Lsh"), uid("Lsh")
                a.scmp("s_cmp_lg_u32", S(SP_SH), 0)
                a.lines.append("    s_cbranch_scc1 %s" % l1)
                a.mfma32(P_ACC + 128, w, o0)
                a.lines.append("    s_branch %s" % l2)
                a.lines.append(l1 + ":")
                a.mfma32(P_ACC + 128, w, o1)
                a.lines.append(l2 + ":")
            if i + P_NW < 80:
                wload(i + P_NW)


def gen_P(a):
    a.label("Lp_start")
    diag_init(a)
    a.misc("s_setprio 3")
    a.salu("s_sub_u32", S(SP_W), "s3", 4)
    a.valu("v_lshlrev_b32", V(P_L16), 4, "v0")
    a.salu("s_lshl_b32", "s59", "s6", 4)
    a.salu("s_lshl_b32", "s60", "s5", 2)
    a.salu("s_add_u32", "s59", "s59", "s60")
    a.salu("s_lshl_b32", "s59", "s59", 17)
    a.salu("s_add_u32", "s38", "s38", "s59")
    a.salu("s_addc_u32", "s39", "s39", 0)
    a.salu("s_add_u32", "s40", "s40", "s59")
    a.salu("s_addc_u32", "s41", "s41", 0)
    a.srd(SP_K, 38, 39, 4 * 131072)
    a.srd(SP_V, 40, 41, 4 * 131072)
    a.valu("v_lshrrev_b32", V(P_T2), 4, "v0")
    a.valu("v_and_b32", V(P_T0), 15, "v0")
    a.salu("s_lshl_b32", "s59", S(SP_W), 12)
    a.valu("v_lshl_add_u32", V(P_T1), V(P_T2), 8, "s59")
    for i in range(4):
        a.valu("v_add_u32", V(P_T3), 4 * i, V(P_T2))
        a.valu("v_xor_b32", V(P_T3), V(P_T3), V(P_T0))
        a.valu("v_lshl_add_u32", V(P_VDK + i), V(P_T3), 4, V(P_T1))
    a.valu("v_lshlrev_b32", V(P_T3), 2, V(P_T2))
    a.valu("v_xor_b32", V(P_T3), V(P_T3), V(P_T0))
    a.valu("v_lshl_add_u32", V(P_VDV), V(P_T3), 4, V(P_T1))
    a.valu("v_add_u32", V(P_VDQ), "s59", V(P_L16))
    a.valu("v_mov_b32", V(P_FLG), FLG)
    a.valu("v_mov_b32", V(P_CNT), 0)
    a.valu("v_mov_b32", V(P_OCNT), 0)
    a.valu("v_add_u32", V(P_OA), OBUF, V(P_L16))
    a.salu("s_lshl_b32", "s60", S(SP_W), 2)
    a.salu("s_add_u32", "s60", "s60", FLG + F_CL)
    a.valu("v_mov_b32", V(P_FW), "s60")
    for r in (SP_YU, SP_PEND, SP_SPIN, SP_QOK):
        a.salu("s_mov_b32", S(r), 0)
    a.salu("s_and_b32", S(SP_U0), "s6", 3)
    a.salu("s_lshl_b32", S(SP_KN), S(SP_U0), 17)
    a.salu("s_add_u32", S(SP_VN), S(SP_KN), SLOT)
    a.salu("s_add_u32", S(SP_KN), S(SP_KN), 2 * SLOT)
    a.salu("s_add_u32", S(SP_QN), S(SP_U0), 1)
    a.salu("s_and_b32", S(SP_QN), S(SP_QN), 3)
    a.salu("s_lshl_b32", S(SP_QN), S(SP_QN), 15)
    a.salu("s_add_u32", S(SP_WLIM), "s59", NSLOT * SLOT)
    a.salu("s_add_u32", S(SP_WS), "s59", ((RING0 + 5) % NSLOT) * SLOT)
    a.salu("s_mov_b32", S(SP_TN), 5)
    a.salu("s_mov_b32", S(SP_PI), 5)
    a.label("Lp_qw")
    a.ds_read("ds_read_b32", P_T0, 1, P_FLG, off=F_QGO)
    a.waitcnt(lgkm=0)
    a.readfirstlane(SP_T, P_T0)
    a.scmp("s_cmp_ge_u32", S(SP_T), 4)
    a.branch("s_cbranch_scc1", "Lp_qgo")
    a.misc("s_sleep 1")
    a.salu("s_add_u32", S(SP_SPIN), S(SP_SPIN), 1)
    a.scmp("s_cmp_lt_u32", S(SP_SPIN), 8 * SPIN_CAP)
    a.branch("s_cbranch_scc1", "Lp_qw")
    a.label("Lp_qgo")
    a.salu("s_mov_b32", S(SP_SPIN), 0)
    a.waitcnt(vm=22)
    lds_post(a, P_FW, P_CNT, 5)
    p_issue_tile(a, False)
    p_issue_tile(a, False)
    a.salu("s_mov_b32", S(SP_PEND), 2)
    a.waitcnt(vm=8)
    signal_phase1(a, P_FLG, P_T0, P_T1, P_T2, P_T3, SP_T, SP_T2)
    a.salu("s_lshl_b32", "s59", "s4", 2)
    a.salu("s_add_u32", "s59", "s59", S(SP_W))
    a.salu("s_lshl_b32", "s59", "s59", 4)
    a.salu("s_lshl_b32", "s60", "s5", 2)
    a.salu("s_add_u32", "s59", "s59", "s60")
    a.salu("s_mul_i32", "s59", "s59", 81920)
    a.salu("s_add_u32", "s59", "s59", WOP_OFF)
    a.salu("s_add_u32", "s60", "s56", "s59")
    a.salu("s_addc_u32", "s61", "s57", 0)
    a.srd(SP_WO, 60, 61, 4 * 81920)
    a.salu("s_mul_i32", "s59", "s7", 16 * 18432)
    a.salu("s_add_u32", "s59", "s59", O_OFF)
    a.salu("s_add_u32", "s60", "s56", "s59")
    a.salu("s_addc_u32", "s61", "s57", 0)
    a.srd(SP_X, 60, 61, 16 * 18432)
    a.srd(SP_OUT, 52, 53, 32 * 64 * 2304)
    a.salu("s_and_b32", S(SP_SH), S(SP_W), 1)
    a.salu("s_and_b32", S(SP_YT), "s6", 3)
    a.salu("s_mul_i32", S(SP_YT), S(SP_YT), PHI)
    a.salu("s_add_u32", S(SP_YT), S(SP_YT), 18)
    for i in range(144):
        a.valu("v_mov_b32", V(P_ACC + i), 0)

    a.label("Lp_loop")
    stamp(a, 5)
    a.scmp("s_cmp_lt_u32", S(SP_PEND), INFL)
    a.branch("s_cbranch_scc1", "Lp_chk")
    p_retire_one(a)
    stamp(a, 1)
    a.label("Lp_chk")
    a.ds_read("ds_read_b128", P_F, 4, P_FLG, off=F_CD)
    a.ds_read("ds_read_b128", P_F + 4, 4, P_FLG, off=F_OW)
    a.waitcnt(lgkm=0)
    lds_min4(a, P_F, SP_CD)
    lds_min4(a, P_F + 4, SP_T2)
    a.scmp("s_cmp_le_u32", S(SP_T2), S(SP_YU))
    a.branch("s_cbranch_scc1", "Lp_tile")
    a.salu("s_min_u32", S(SP_T), S(SP_YT), NTILE)
    a.scmp("s_cmp_ge_u32", S(SP_CD), S(SP_T))
    a.branch("s_cbranch_scc1", "Lp_y")
    a.label("Lp_tile")
    a.scmp("s_cmp_ge_u32", S(SP_TN), NTILE)
    a.branch("s_cbranch_scc1", "Lp_nospace")
    a.salu("s_add_u32", S(SP_T), S(SP_CD), NSLOT)
    a.scmp("s_cmp_ge_u32", S(SP_TN), S(SP_T))
    a.branch("s_cbranch_scc1", "Lp_nospace")
    p_issue_tile(a)
    a.salu("s_add_u32", S(SP_PEND), S(SP_PEND), 1)
    stamp(a, 0)
    a.branch("s_branch", "Lp_loop")
    a.label("Lp_nospace")
    a.scmp("s_cmp_eq_u32", S(SP_PEND), 0)
    a.branch("s_cbranch_scc1", "Lp_nap")
    p_retire_one(a)
    stamp(a, 1)
    a.branch("s_branch", "Lp_loop")
    a.label("Lp_nap")
    a.salu("s_add_u32", S(SP_SPIN), S(SP_SPIN), 1)
    a.scmp("s_cmp_ge_u32", S(SP_SPIN), 4 * SPIN_CAP)
    a.branch("s_cbranch_scc1", "Lp_fin")
    a.misc("s_sleep 1")
    stamp(a, 2)
    a.branch("s_branch", "Lp_loop")

    a.label("Lp_y")
    a.scmp("s_cmp_eq_u32", S(SP_PEND), 0)
    a.branch("s_cbranch_scc1", "Lp_y2")
    p_retire_one(a)
    a.branch("s_branch", "Lp_y")
    a.label("Lp_y2")
    a.scmp("s_cmp_lg_u32", S(SP_YU), 0)
    a.branch("s_cbranch_scc1", "Lp_y3")
    a.salu("s_lshl_b32", S(SP_T), "s4", 4)
    a.valu("v_mov_b32", V(P_F + 4), S(SP_T))
    a.salu("s_mov_b32", S(SP_I), 0)
    a.label("Lp_wp")
    a.op("global_load_dwordx4 %s, %s, s[54:55] sc1" % (V(P_F, 4), V(P_F + 4)), "vmem", vr(P_F, 4), [V(P_F + 4), "s54", "s55"])
    a.waitcnt(vm=0)
    for i in range(4):
        a.valu("v_bfe_u32", V(P_F + i), V(P_F + i), 16, 8)
    lds_min4(a, P_F, SP_T)
    a.scmp("s_cmp_ge_u32", S(SP_T), 32)
    a.branch("s_cbranch_scc1", "Lp_y3")
    a.misc("s_sleep 8")
    a.salu("s_add_u32", S(SP_I), S(SP_I), 1)
    a.scmp("s_cmp_lt_u32", S(SP_I), SPIN_CAP)
    a.branch("s_cbranch_scc1", "Lp_wp")
    a.label("Lp_y3")
    stamp(a, 1)
    if YPRIO != 3:
        a.misc("s_setprio %d" % YPRIO)
    gen_y(a)
    if YPRIO != 3:
        a.misc("s_setprio 3")
    stamp(a, 4)
    a.salu("s_add_u32", S(SP_YU), S(SP_YU), 1)
    a.salu("s_add_u32", S(SP_YT), S(SP_YT), 18)
    a.scmp("s_cmp_lt_u32", S(SP_YU), 4)
    a.branch("s_cbranch_scc1", "Lp_loop")
    a.label("Lp_fin")

    a.scmp("s_cmp_eq_u32", S(SP_W), "s5")
    a.branch("s_cbranch_scc1", "Lp_own")
    a.salu("s_lshl_b32", S(SP_T), S(SP_W), 2)
    a.salu("s_add_u32", S(SP_T), S(SP_T), "s5")
    a.salu("s_mul_i32", S(SP_A), S(SP_T), 18432)
    for x in range(18):
        r = P_ACC + 8 * x
        for i in range(4):
            a.valu("v_cvt_pk_bf16_f32", V(r + i), V(r + 2 * i), V(r + 2 * i + 1))
        a.buf_store(r, 4, P_L16, SP_X, S(SP_A), off=(x & 3) * 1024, flags="sc1")
        if (x & 3) == 3:
            a.salu("s_add_u32", S(SP_A), S(SP_A), 4096)
    a.waitcnt(vm=0)
    a.branch("s_branch", "Lp_sent")
    a.label("Lp_own")
    for x in range(36):
        a.ds_write("ds_write_b128", P_L16, P_ACC + 4 * x, 4, off=x * 1024)
    a.waitcnt(lgkm=0)
    a.label("Lp_sent")
    a.valu("v_mov_b32", V(P_T1), 1)
    a.salu("s_mov_b64", "exec", 1)
    a.op("ds_add_rtn_u32 %s, %s, %s offset:%d" % (V(P_T0), V(P_FLG), V(P_T1), F_XC), "ds", [V(P_T0)], [V(P_FLG), V(P_T1)])
    a.salu("s_mov_b64", "exec", -1)
    a.waitcnt(lgkm=0)
    a.readfirstlane(SP_T, P_T0)
    a.valu("v_mov_b32", V(P_T2), 0)
    a.salu("s_mov_b32", S(SP_PEND), S(SP_T))
    a.scmp("s_cmp_lg_u32", S(SP_T), 3)
    a.branch("s_cbranch_scc1", "Lp_xpoll")
    a.salu("s_mov_b64", "exec", 1)
    a.op("global_atomic_add %s, %s, s[24:25]" % (V(P_T2), V(P_T1)), "vmem", [], [V(P_T2), V(P_T1), "s24", "s25"])
    a.salu("s_mov_b64", "exec", -1)
    a.label("Lp_xpoll")
    stamp(a, 6)
    a.valu("v_bfe_u32", V(P_T3), V(P_L16), 4, 5)
    a.valu("v_mul_u32_u24", V(P_T3), 2304, V(P_T3))
    a.valu("v_lshrrev_b32", V(P_T1), 9, V(P_L16))
    a.valu("v_lshl_add_u32", V(P_T3), V(P_T1), 4, V(P_T3))
    a.salu("s_mul_i32", S(SP_KN), "s6", 147456)
    a.salu("s_mul_i32", S(SP_B), "s4", 1152)
    a.salu("s_add_u32", S(SP_KN), S(SP_KN), S(SP_B))
    a.salu("s_add_u32", S(SP_T), "s5", 1)
    a.salu("s_lshr_b32", S(SP_T), S(SP_T), 1)
    a.salu("s_lshl_b32", S(SP_T2), "s5", 2)
    a.salu("s_add_u32", S(SP_T), S(SP_T), S(SP_T2))
    a.salu("s_lshl_b32", S(SP_VN), S(SP_T), 6)
    a.salu("s_lshr_b32", S(SP_T), "s5", 1)
    a.salu("s_mul_i32", S(SP_T), S(SP_T), 9 * 64)
    a.salu("s_add_u32", S(SP_T), S(SP_T), 256)
    a.salu("s_and_b32", S(SP_T2), "s5", 1)
    a.salu("s_mul_i32", S(SP_T2), S(SP_T2), 32 * 2304)
    a.salu("s_add_u32", S(SP_QN), S(SP_T), S(SP_T2))
    a.salu("s_mov_b32", S(SP_SPIN), 0)
    a.scmp("s_cmp_lg_u32", S(SP_PEND), 3)
    a.branch("s_cbranch_scc1", "Lp_xl")
    a.label("Lp_xp")
    a.op("global_load_dword %s, %s, s[24:25] sc1" % (V(P_T0), V(P_T2)), "vmem", [V(P_T0)], [V(P_T2), "s24", "s25"])
    a.waitcnt(vm=0)
    a.readfirstlane(SP_T, P_T0)
    a.scmp("s_cmp_ge_u32", S(SP_T), 4)
    a.branch("s_cbranch_scc1", "Lp_xok")
    a.misc("s_sleep 4")
    a.salu("s_add_u32", S(SP_SPIN), S(SP_SPIN), 1)
    a.scmp("s_cmp_lt_u32", S(SP_SPIN), SPIN_CAP)
    a.branch("s_cbranch_scc1", "Lp_xp")
    a.label("Lp_xok")
    a.valu("v_mov_b32", V(P_T0), 1)
    a.salu("s_mov_b64", "exec", 1)
    a.ds_write("ds_write_b32", P_FLG, P_T0, 1, off=F_XC + 4)
    a.salu("s_mov_b64", "exec", -1)
    a.branch("s_branch", "Lp_xgo")
    a.label("Lp_xl")
    a.misc("s_sleep 1")
    a.ds_read("ds_read_b32", P_T0, 1, P_FLG, off=F_XC + 4)
    a.waitcnt(lgkm=0)
    a.readfirstlane(SP_T, P_T0)
    a.scmp("s_cmp_lg_u32", S(SP_T), 0)
    a.branch("s_cbranch_scc1", "Lp_xgo")
    a.salu("s_add_u32", S(SP_SPIN), S(SP_SPIN), 1)
    a.scmp("s_cmp_lt_u32", S(SP_SPIN), 8 * SPIN_CAP)
    a.branch("s_cbranch_scc1", "Lp_xl")
    a.label("Lp_xgo")
    stamp(a, 7)
    a.salu("s_mul_i32", S(SP_A), "s5", 4 * 18432)
    a.salu("s_lshl_b32", S(SP_T), S(SP_W), 10)
    a.salu("s_add_u32", S(SP_A), S(SP_A), S(SP_T))
    for src in range(4):
        a.scmp("s_cmp_eq_u32", "s5", src)
        a.salu("s_cselect_b32", S(SP_B), 0x10000000, S(SP_A))
        for k in range(5):
            a.buf_load(P_ACC + 20 * src + 4 * k, 4, P_L16, SP_X, S(SP_B), flags="sc1")
            a.salu("s_add_u32", S(SP_B), S(SP_B), 4096)
        a.salu("s_add_u32", S(SP_A), S(SP_A), 18432)
    a.salu("s_lshl_b32", S(SP_T), S(SP_W), 11)
    a.valu("v_add_u32", V(P_T0), S(SP_T), V(P_L16))
    OWN = P_ACC + 80
    for k in range(5):
        for hq in range(2):
            a.ds_read("ds_read_b128", OWN + 8 * k + 4 * hq, 4, P_T0, off=k * 8192 + hq * 1024)
    a.waitcnt(vm=0, lgkm=0)
    for k in range(5):
        for src in range(4):
            for i in range(4):
                pk = P_ACC + 20 * src + 4 * k + i
                a.valu("v_lshlrev_b32", V(P_T0), 16, V(pk))
                a.valu("v_and_b32", V(P_T1), 0xFFFF0000, V(pk))
                a.valu("v_add_f32", V(OWN + 8 * k + 2 * i), V(OWN + 8 * k + 2 * i), V(P_T0))
                a.valu("v_add_f32", V(OWN + 8 * k + 2 * i + 1), V(OWN + 8 * k + 2 * i + 1), V(P_T1))
        r = OWN + 8 * k
        for i in range(4):
            a.valu("v_cvt_pk_bf16_f32", V(r + i), V(r + 2 * i), V(r + 2 * i + 1))
        a.salu("s_add_u32", S(SP_T), S(SP_W), 4 * k)
        a.salu("s_lshr_b32", S(SP_T2), S(SP_T), 2)
        a.salu("s_lshl_b32", S(SP_T2), S(SP_T2), 6)
        a.salu("s_add_u32", S(SP_T2), S(SP_T2), S(SP_VN))
        a.salu("s_bfe_u32", S(SP_I), S(SP_T), 0x10001)
        a.salu("s_mul_i32", S(SP_I), S(SP_I), 32 * 2304)
        a.salu("s_add_u32", S(SP_T2), S(SP_T2), S(SP_I))
        a.scmp("s_cmp_ge_u32", S(SP_T), 16)
        a.salu("s_cselect_b32", S(SP_T2), S(SP_QN), S(SP_T2))
        a.salu("s_and_b32", S(SP_I), S(SP_T), 1)
        a.salu("s_lshl_b32", S(SP_I), S(SP_I), 5)
        a.salu("s_add_u32", S(SP_T2), S(SP_T2), S(SP_I))
        a.salu("s_add_u32", S(SP_T2), S(SP_T2), S(SP_KN))
        a.scmp("s_cmp_ge_u32", S(SP_T), 18)
        a.salu("s_cselect_b32", S(SP_T2), 0x10000000, S(SP_T2))
        a.buf_store(r, 4, P_T3, SP_OUT, S(SP_T2))
    if DIAG:
        a.waitcnt(vm=0)
        stamp(a, 3)
        diag_dump(a, P_T0)
    a.branch("s_branch", "Lm_done")


def main():
    out = sys.argv[1] if len(sys.argv) > 1 else "cdna_kernels/%s.s" % NAME
    a = Asm()
    a.raw(HEADER)
    gen_qproj_kernel(a)
    gen_main(a)
    a.raw('.section .rodata,"a"\n.p2align 6')
    a.raw(kd(NAME + "_kernel", 256, 102 if DIAG else 80, 256))
    open(out, "w").write(a.text())
    print("wrote %s: %d instructions, %d nop states" % (out, a.n_ins, a.nops_inserted))


if __name__ == "__main__":
    main()
```
